```python
import torch

def _softmax(x, axis=-1):
    return torch.softmax(x, dim=axis)
def _gelu(x):
    return torch.nn.functional.gelu(x, approximate="tanh")
def _silu(x):
    return torch.nn.functional.silu(x)
def _sigmoid(x):
    return torch.sigmoid(x)
def _layernorm(x, axis=-1, eps=1e-5):
    m = x.mean(dim=axis, keepdim=True)
    v = x.var(dim=axis, keepdim=True, unbiased=False)
    return (x - m) / torch.sqrt(v + eps)
def _scatter_add(tgt, idx, src, axis=0):
    return tgt.clone().index_add_(axis, idx, src)
def _segment_sum(src, seg, n):
    out = torch.zeros((n,) + src.shape[1:], dtype=src.dtype)
    return out.index_add_(0, seg, src)
def _pad(x, pw):
    flat = tuple(v for pair in reversed(pw) for v in pair)
    return torch.nn.functional.pad(x, flat)

kernel_name = 'concat_heads__mha_block_cached__mha_block_cached__near_ridge'

def setup_inputs():

    _w = (lambda a: (lambda t: t.to(torch.bfloat16) if t.is_floating_point() else t)(torch.as_tensor(a)))
    def _A_setup():
        B, Sq, D = 32, 64, 512
        H, Sk, Dh = 32, 512, 128
        return {
            "x": _w((lambda *s: torch.randn(*s, dtype=torch.bfloat16) * 0.8)(B, Sq, D)),
            "k_cache": _w((lambda *s: torch.randn(*s, dtype=torch.bfloat16) * 0.8)(B, H, Sk, Dh)),
            "v_cache": _w((lambda *s: torch.randn(*s, dtype=torch.bfloat16) * 0.05)(B, H, Sk, Dh)),
            "wq": _w((lambda *s: torch.randn(*s, dtype=torch.bfloat16) * 0.8)(D, H * Dh) * (D ** -0.5)),
            "wo": _w((lambda *s: torch.randn(*s, dtype=torch.bfloat16) * 0.05)(H * Dh, D) * ((H * Dh) ** -0.5)),
        }
    _A_in = _A_setup()

    def _B_setup():
        B, Sq, D = 32, 64, 512
        H, Sk, Dh = 32, 512, 128
        return {
            "x": _w((lambda *s: torch.randn(*s, dtype=torch.bfloat16) * 0.8)(B, Sq, D)),
            "k_cache": _w((lambda *s: torch.randn(*s, dtype=torch.bfloat16) * 0.8)(B, H, Sk, Dh)),
            "v_cache": _w((lambda *s: torch.randn(*s, dtype=torch.bfloat16) * 0.05)(B, H, Sk, Dh)),
            "wq": _w((lambda *s: torch.randn(*s, dtype=torch.bfloat16) * 0.8)(D, H * Dh) * (D ** -0.5)),
            "wo": _w((lambda *s: torch.randn(*s, dtype=torch.bfloat16) * 0.05)(H * Dh, D) * ((H * Dh) ** -0.5)),
        }
    _B_in = _B_setup()

    return {
        "A_x": _A_in["x"],
        "A_k_cache": _A_in["k_cache"],
        "A_v_cache": _A_in["v_cache"],
        "A_wq": _A_in["wq"],
        "A_wo": _A_in["wo"],
        "B_x": _B_in["x"],
        "B_k_cache": _B_in["k_cache"],
        "B_v_cache": _B_in["v_cache"],
        "B_wq": _B_in["wq"],
        "B_wo": _B_in["wo"],
    }

def reference(A_x, A_k_cache, A_v_cache, A_wq, A_wo, B_x, B_k_cache, B_v_cache, B_wq, B_wo):
    def _A_ref(x, k_cache, v_cache, wq, wo):
        B, Sq, D = x.shape
        H, Dh = 32, 128
        q = (lambda x, *d: x.permute(*d))((x @ wq).reshape(B, Sq, H, Dh), 0, 2, 1, 3)
        scores = torch.einsum("bhqd,bhkd->bhqk", q, k_cache) * (Dh ** -0.5)
        p = _softmax(scores, axis=-1)
        o = torch.einsum("bhqk,bhkd->bhqd", p, v_cache)
        return (lambda x, *d: x.permute(*d))(o, 0, 2, 1, 3).reshape(B, Sq, H * Dh) @ wo

    def _B_ref(x, k_cache, v_cache, wq, wo):
        B, Sq, D = x.shape
        H, Dh = 32, 128
        q = (lambda x, *d: x.permute(*d))((x @ wq).reshape(B, Sq, H, Dh), 0, 2, 1, 3)
        scores = torch.einsum("bhqd,bhkd->bhqk", q, k_cache) * (Dh ** -0.5)
        p = _softmax(scores, axis=-1)
        o = torch.einsum("bhqk,bhkd->bhqd", p, v_cache)
        return (lambda x, *d: x.permute(*d))(o, 0, 2, 1, 3).reshape(B, Sq, H * Dh) @ wo

    a = _A_ref(A_x, A_k_cache, A_v_cache, A_wq, A_wo)
    b = _B_ref(B_x, B_k_cache, B_v_cache, B_wq, B_wo)
    return torch.concatenate([a, b], axis=-1)
```

```python
import sys, struct

KN = "concat_heads__mha_block_cached__mha_block_cached__near_ridge_kernel"
RN = "mha_reduce_kernel"

class Cfg:
    NKV = 5
    NW = 3
    NB = 6
    warm = True
    debug = False

def f32bits(x):
    return struct.unpack("<I", struct.pack("<f", x))[0]

S0 = 0
OACC = 64
QF = 128
OF = 160
FB = 192
AD = 216
vKB, vVB, vWQB, vWOB = 228, 229, 230, 231
vD = 232
vXown, vXpar, vXq = 237, 238, 239
vM, vM2, vSum, vSum2, vRinv, vT0, vT1 = 240, 241, 242, 243, 244, 245, 246
vX4own, vX4par = 247, 248
vPS = 249
AOUT = 0
AX = 128

sK, sV, sWQ, sWO, sXS = 8, 12, 16, 20, 24
sRole, sH, sKVoff, sWoOff, sWqOff = 28, 29, 30, 31, 32
sP, sPend, sPstart, sKVc, sWc, sC, sT0, sT1, sWave, sHW = 33, 34, 35, 60, 61, 62, 63, 64, 65, 66
sB, sHG, sBR = 67, 68, 69

def gen(cfg=Cfg):
    NKV, NW, NB = cfg.NKV, cfg.NW, cfg.NB
    DKV, DW = NKV - 1, NW - 1
    KVBASE = 0
    WBASE = NKV * 16384
    XBASE = WBASE + NW * 16384
    LDS = XBASE + 32768
    assert LDS <= 163840
    L = []
    A = L.append
    lab = [0]
    def newlab(p):
        lab[0] += 1
        return f"L_{p}_{lab[0]}"

    A(f"; @launch kernel={KN} grid=(256,1,1) block=(256,1,1) lds={LDS}")
    A(f"; @launch kernel={RN} grid=(512,1,1) block=(256,1,1) lds=0")
    A('.amdgcn_target "amdgcn-amd-amdhsa--gfx950"')
    A(".text")
    A(f".globl {KN}"); A(".p2align 8"); A(f".type {KN},@function"); A(f"{KN}:")
    A("s_cmp_ge_u32 s2, 256"); A("s_cbranch_scc1 L_end")
    A("s_load_dwordx8 s[36:43], s[0:1], 0")
    A("s_load_dwordx2 s[44:45], s[0:1], 32")
    A("s_load_dwordx8 s[48:55], s[0:1], 40")
    A("s_load_dwordx2 s[56:57], s[0:1], 72")
    A("s_load_dwordx2 s[58:59], s[0:1], 96")
    A(f"s_lshr_b32 s{sBR}, s2, 2"); A(f"s_and_b32 s{sBR}, s{sBR}, 1")
    A(f"s_and_b32 s{sHG}, s2, 3")
    A(f"s_lshr_b32 s{sB}, s2, 3")
    A("v_lshrrev_b32 v1, 6, v0")
    A("v_and_b32 v2, 63, v0")
    A(f"v_readfirstlane_b32 s{sWave}, v1")
    A("s_waitcnt lgkmcnt(0)")
    A(f"s_cmp_eq_u32 s{sBR}, 0")
    for i in range(10):
        A(f"s_cselect_b32 s{36+i}, s{36+i}, s{48+i}")
    A(f"s_lshl_b32 s{sT0}, s{sB}, 22"); A(f"s_lshl_b32 s{sT1}, s{sHG}, 20"); A(f"s_add_u32 s{sT0}, s{sT0}, s{sT1}")
    A(f"s_add_u32 s{sK}, s38, s{sT0}"); A(f"s_addc_u32 s{sK+1}, s39, 0"); A(f"s_mov_b32 s{sK+2}, 0x100000"); A(f"s_mov_b32 s{sK+3}, 0x20000")
    A(f"s_add_u32 s{sV}, s40, s{sT0}"); A(f"s_addc_u32 s{sV+1}, s41, 0"); A(f"s_mov_b32 s{sV+2}, 0x100000"); A(f"s_mov_b32 s{sV+3}, 0x20000")
    A(f"s_lshl_b32 s{sT0}, s{sHG}, 11")
    A(f"s_add_u32 s{sWQ}, s42, s{sT0}"); A(f"s_addc_u32 s{sWQ+1}, s43, 0"); A(f"s_sub_u32 s{sWQ+2}, 0x400000, s{sT0}"); A(f"s_mov_b32 s{sWQ+3}, 0x20000")
    A(f"s_add_u32 s{sWO}, s44, s{sT1}"); A(f"s_addc_u32 s{sWO+1}, s45, 0"); A(f"s_mov_b32 s{sWO+2}, 0x100000"); A(f"s_mov_b32 s{sWO+3}, 0x20000")
    A(f"s_lshl_b32 s{sT0}, s{sB}, 16")
    A(f"s_add_u32 s{sXS}, s36, s{sT0}"); A(f"s_addc_u32 s{sXS+1}, s37, 0"); A(f"s_mov_b32 s{sXS+2}, 0x10000"); A(f"s_mov_b32 s{sXS+3}, 0x20000")
    A(f"s_lshr_b32 s{sRole}, s{sWave}, 1")
    A(f"s_and_b32 s{sHW}, s{sWave}, 1")
    A(f"s_mov_b32 s{sC}, 0x{f32bits(128 ** -0.5 * 1.4426950408889634):08x}")
    A("v_lshrrev_b32 v3, 5, v2"); A("v_and_b32 v4, 31, v2")
    A("v_bfe_u32 v5, v2, 4, 1"); A("v_bfe_u32 v6, v2, 2, 2"); A("v_and_b32 v7, 3, v2")
    A(f"s_lshl_b32 s{sT0}, s{sHW}, 15")
    A("v_lshlrev_b32 v8, 10, v4"); A("v_lshl_add_u32 v8, v3, 4, v8")
    for s in range(32):
        A(f"buffer_load_dwordx4 a[{AX+4*s}:{AX+4*s+3}], v8, s[{sXS}:{sXS+3}], s{sT0} offen offset:{s*32}")
    A("v_and_b32 v8, 1, v7"); A("v_lshlrev_b32 v8, 1, v8"); A("v_lshrrev_b32 v9, 1, v7"); A("v_or_b32 v8, v8, v9")
    A("v_lshlrev_b32 v8, 3, v8"); A("v_lshl_add_u32 v8, v5, 5, v8")
    A(f"v_mov_b32 v9, s{sRole}")
    A("v_lshlrev_b32 v10, 5, v9"); A("v_lshl_add_u32 v10, v3, 2, v10"); A("v_add_u32 v10, v10, v6")
    A("v_lshlrev_b32 v11, 1, v9"); A("v_xor_b32 v11, v11, v6")
    A("v_lshlrev_b32 v10, 8, v10"); A("v_lshl_add_u32 v10, v11, 6, v10"); A(f"v_add_u32 v{vVB}, v10, v8")
    A("v_lshl_add_u32 v12, v3, 3, v6")
    A("v_lshlrev_b32 v10, 8, v12"); A("v_lshl_add_u32 v10, v11, 6, v10"); A(f"v_add_u32 v{vWQB}, v10, v8")
    A("v_lshlrev_b32 v10, 10, v12"); A("v_lshl_add_u32 v10, v9, 9, v10"); A("v_lshl_add_u32 v10, v6, 6, v10"); A(f"v_add_u32 v{vWOB}, v10, v8")
    A("v_lshl_add_u32 v10, v9, 5, v4"); A("v_and_b32 v11, 15, v4"); A("v_xor_b32 v11, v11, v3")
    A("v_lshlrev_b32 v10, 8, v10"); A(f"v_lshl_add_u32 v{vKB}, v11, 4, v10")
    A("v_lshlrev_b32 v10, 4, v2")
    A(f"s_lshl_b32 s{sT0}, s{sWave}, 13"); A(f"s_add_u32 s{sT0}, s{sT0}, {XBASE}")
    A(f"v_add_u32 v{vXown}, s{sT0}, v10")
    A(f"v_xor_b32 v{vXpar}, 0x4000, v{vXown}") if (XBASE % 32768 == 0) else None
    if XBASE % 32768 != 0:
        A(f"s_xor_b32 s{sT1}, s{sWave}, 2"); A(f"s_lshl_b32 s{sT1}, s{sT1}, 13"); A(f"s_add_u32 s{sT1}, s{sT1}, {XBASE}")
        A(f"v_add_u32 v{vXpar}, s{sT1}, v10")
    A(f"s_lshl_b32 s{sT1}, s{sHW}, 13"); A(f"s_add_u32 s{sT1}, s{sT1}, {XBASE}")
    A(f"v_add_u32 v{vXq}, s{sT1}, v10")
    A("v_mul_u32_u24 v11, 12, v2")
    A(f"v_sub_u32 v{vX4own}, v{vXown}, v11"); A(f"v_sub_u32 v{vX4par}, v{vXpar}, v11")
    A("v_lshrrev_b32 v10, 4, v2"); A("v_and_b32 v11, 15, v2")
    A("v_lshlrev_b32 v12, 2, v10"); A("v_xor_b32 v12, v12, v11"); A("v_lshlrev_b32 v12, 4, v12")
    lw = newlab("rolew"); le = newlab("rolee")
    A(f"s_cmp_lg_u32 s{sRole}, 0"); A(f"s_cbranch_scc1 {lw}")
    for c in range(4):
        A(f"v_add_u32 v13, {4*c}, v10"); A("v_xor_b32 v13, v13, v11"); A("v_lshlrev_b32 v13, 4, v13")
        A(f"v_lshl_add_u32 v{vD+c}, v10, 8, v13")
    A(f"v_lshl_add_u32 v{vD+4}, v10, 8, v12")
    A(f"s_lshl_b32 s{sP}, s{sHW}, 13"); A(f"s_add_u32 s{sP}, s{sP}, {KVBASE}")
    A(f"s_mov_b32 s{sPstart}, s{sP}"); A(f"s_add_u32 s{sPend}, s{sP}, {NKV*16384}")
    A(f"s_branch {le}")
    A(f"{lw}:")
    for c in range(4):
        A(f"v_xor_b32 v13, {c<<2}, v2"); A(f"v_lshlrev_b32 v{vD+c}, 4, v13")
    A(f"v_lshl_add_u32 v{vD+4}, v10, 13, v12")
    A(f"s_lshl_b32 s{sP}, s{sHW}, 13"); A(f"s_add_u32 s{sP}, s{sP}, {WBASE}")
    A(f"s_mov_b32 s{sPstart}, s{sP}"); A(f"s_add_u32 s{sPend}, s{sP}, {NW*16384}")
    A(f"{le}:")
    A(f"s_lshl_b32 s{sKVoff}, s{sHW}, 13")
    A(f"s_sub_u32 s{sWoOff}, s{sKVoff}, 131072")
    A(f"s_lshl_b32 s{sWqOff}, s{sHW}, 18")
    A(f"s_mov_b32 s{sKVc}, {KVBASE}"); A(f"s_mov_b32 s{sWc}, {WBASE}")
    A(f"s_mov_b32 s{sH}, 0")

    def adv_p():
        A(f"s_add_u32 s{sP}, s{sP}, 16384"); A(f"s_cmp_ge_u32 s{sP}, s{sPend}"); A(f"s_cselect_b32 s{sP}, s{sPstart}, s{sP}")
    def issue_kv(m):
        tt, carry = m & 15, m >> 4
        srd = sK if tt < 8 else sV
        off = (tt & 7) * 16384 + carry * 131072
        for g in range(2):
            A(f"s_add_u32 s{sT0}, s{sKVoff}, {off + g*4096}")
            A(f"s_add_u32 m0, s{sP}, {g*4096}")
            A("s_nop 0")
            for i in range(4):
                vo = vD + i if tt < 8 else vD + 4
                A(f"buffer_load_dwordx4 v{vo}, s[{srd}:{srd+3}], s{sT0} offen offset:{i*1024} nt lds")
        adv_p()
    def issue_wo(tile, carry):
        off = tile * 16384 + carry * 131072
        for g in range(2):
            A(f"s_add_u32 s{sT0}, s{sWoOff}, {off + g*4096}")
            A(f"s_add_u32 m0, s{sP}, {g*4096}")
            A("s_nop 0")
            for i in range(4):
                A(f"buffer_load_dwordx4 v{vD+i}, s[{sWO}:{sWO+3}], s{sT0} offen offset:{i*1024} lds")
        adv_p()
    def issue_wq(tile):
        for i in range(8):
            A(f"s_add_u32 s{sT0}, s{sWqOff}, {tile*524288 + i*32768}")
            A(f"s_add_u32 m0, s{sP}, {i*1024}")
            A("s_nop 0")
            A(f"buffer_load_dwordx4 v{vD+4}, s[{sWQ}:{sWQ+3}], s{sT0} offen lds")
        adv_p()
    def role_block(kv_fn, w_fn):
        if kv_fn is None and w_fn is None: return
        l1 = newlab("rw"); l2 = newlab("re")
        A(f"s_cmp_lg_u32 s{sRole}, 0"); A(f"s_cbranch_scc1 {l1}")
        if kv_fn: kv_fn()
        A(f"s_branch {l2}")
        A(f"{l1}:")
        if w_fn: w_fn()
        A(f"{l2}:")
    def role_wait(nkv, nw):
        if nkv is not None and nw is not None and nkv == nw:
            A(f"s_waitcnt vmcnt({nkv})"); return
        l1 = newlab("ww"); l2 = newlab("we")
        A(f"s_cmp_lg_u32 s{sRole}, 0"); A(f"s_cbranch_scc1 {l1}")
        if nkv is not None: A(f"s_waitcnt vmcnt({nkv})")
        A(f"s_branch {l2}")
        A(f"{l1}:")
        if nw is not None: A(f"s_waitcnt vmcnt({nw})")
        A(f"{l2}:")

    def pro_kv():
        for m in range(DKV): issue_kv(m)
    def pro_w():
        for m in range(DW): issue_wq(m)
    role_block(pro_kv, pro_w)
    nwarm = 0
    if cfg.warm:
        A("v_lshlrev_b32 v10, 4, v2")
        A(f"s_lshl_b32 s{sT0}, s{sB}, 17"); A(f"s_lshl_b32 s{sT1}, s{sWave}, 15"); A(f"s_add_u32 s{sT0}, s{sT0}, s{sT1}")
        for r in range(4):
            A(f"s_add_u32 s{sT1}, s{sT0}, {r*8192}")
            A(f"buffer_load_dwordx4 v[{16+8*r}:{19+8*r}], v10, s[{sWQ}:{sWQ+3}], s{sT1} offen")
            A(f"buffer_load_dwordx4 v[{20+8*r}:{23+8*r}], v10, s[{sWQ}:{sWQ+3}], s{sT1} offen offset:1024")
        A(f"s_lshl_b32 s{sT0}, s{sB}, 15"); A(f"s_lshl_b32 s{sT1}, s{sWave}, 13"); A(f"s_add_u32 s{sT0}, s{sT0}, s{sT1}")
        A(f"s_add_u32 s{sT1}, s{sT0}, 4096")
        for r in range(4):
            A(f"buffer_load_dwordx4 v[{48+8*r}:{51+8*r}], v10, s[{sWO}:{sWO+3}], s{sT0} offen offset:{r*1024}")
            A(f"buffer_load_dwordx4 v[{52+8*r}:{55+8*r}], v10, s[{sWO}:{sWO+3}], s{sT1} offen offset:{r*1024}")
        nwarm = 16
    for i in range(128): A(f"v_accvgpr_write_b32 a{AOUT+i}, 0")
    for i in range(32): A(f"v_mov_b32 v{OF+i}, 0")

    def adv_c(reg, base, n):
        A(f"s_add_u32 s{reg}, s{reg}, 16384"); A(f"s_cmp_ge_u32 s{reg}, {base + n*16384}"); A(f"s_cselect_b32 s{reg}, {base}, s{reg}")

    def jobs_qk(t):
        js = []
        for s in range(8):
            def rd(dst, s=s): return [f"ds_read_b128 v[{dst}:{dst+3}], v{AD+s}"]
            def mf(a, s=s, t=t):
                d = S0 + 16 * t
                c = "0" if s == 0 else f"v[{d}:{d+15}]"
                return f"v_mfma_f32_32x32x16_bf16 v[{d}:{d+15}], v[{a}:{a+3}], v[{QF+4*s}:{QF+4*s+3}], {c}"
            js.append((rd, mf))
        return js
    def jobs_op(t):
        js = []
        for i in range(8):
            def rd(dst, i=i):
                return [f"ds_read_b64_tr_b16 v[{dst+2*h}:{dst+2*h+1}], v{AD+8+(i&3)} offset:{h*4096 + (i>>2)*256}" for h in range(2)]
            def mf(a, i=i, t=t):
                d = AOUT + 16 * i
                return f"v_mfma_f32_32x32x16_bf16 a[{d}:{d+15}], v[{a}:{a+3}], v[{OF+4*t}:{OF+4*t+3}], a[{d}:{d+15}]"
            js.append((rd, mf))
        return js
    def jobs_pv(t):
        js = []
        for u in range(2):
            for i in range(4):
                def rd(dst, i=i, u=u):
                    return [f"ds_read_b64_tr_b16 v[{dst+2*h}:{dst+2*h+1}], v{AD+i} offset:{u*4096 + h*2048}" for h in range(2)]
                def mf(a, i=i, u=u, t=t):
                    d = OACC + 16 * i
                    c = "0" if (t == 0 and u == 0) else f"v[{d}:{d+15}]"
                    p = S0 + 8 * t + 4 * u
                    return f"v_mfma_f32_32x32x16_bf16 v[{d}:{d+15}], v[{a}:{a+3}], v[{p}:{p+3}], {c}"
                js.append((rd, mf))
        return js
    def jobs_qp(t):
        js = []
        for s in range(4):
            for i in range(2):
                def rd(dst, i=i, s=s):
                    return [f"ds_read_b64_tr_b16 v[{dst+2*h}:{dst+2*h+1}], v{AD+4+i} offset:{s*4096 + h*1024}" for h in range(2)]
                def mf(a, i=i, s=s, t=t):
                    d = QF + 16 * i
                    c = "0" if (t == 0 and s == 0) else f"v[{d}:{d+15}]"
                    x = AX + 4 * (4 * t + s)
                    return f"v_mfma_f32_32x32x16_bf16 v[{d}:{d+15}], v[{a}:{a+3}], a[{x}:{x+3}], {c}"
                js.append((rd, mf))
        return js
    def interleave(a, b):
        out = []
        for i in range(max(len(a), len(b))):
            if i < len(a): out.append(a[i])
            if i < len(b): out.append(b[i])
        return out

    def addr_A(doK, doW):
        if doK:
            A(f"v_add_u32 v{AD}, s{sKVc}, v{vKB}")
            for s in range(1, 8): A(f"v_xor_b32 v{AD+s}, {s<<5}, v{AD}")
        if doW:
            A(f"v_add_u32 v{AD+8}, s{sWc}, v{vWOB}")
            for i in range(1, 4): A(f"v_xor_b32 v{AD+8+i}, {i<<6}, v{AD+8}")
    def addr_B(doV, doW):
        if doV:
            A(f"v_add_u32 v{AD}, s{sKVc}, v{vVB}")
            for i in range(1, 4): A(f"v_xor_b32 v{AD+i}, {i<<6}, v{AD}")
        if doW:
            A(f"v_add_u32 v{AD+4}, s{sWc}, v{vWQB}")
            A(f"v_xor_b32 v{AD+5}, 64, v{AD+4}")

    def run_jobs(jobs, dma, pre_reads=None):
        nds = []
        cnt = [0]
        if pre_reads:
            for s in pre_reads: A(s); cnt[0] += 1
        def issue(j):
            rd, _ = jobs[j]
            for s in rd(FB + 4 * (j % NB)): A(s); cnt[0] += 1
            nds.append(cnt[0])
        for j in range(min(NB, len(jobs))): issue(j)
        if dma: dma()
        for j in range(len(jobs)):
            w = cnt[0] - nds[j]
            assert w <= 15
            A(f"s_waitcnt lgkmcnt({w})")
            A(jobs[j][1](FB + 4 * (j % NB)))
            if j + NB < len(jobs): issue(j + NB)

    for t in range(8):
        addr_B(False, True)
        if t == 0:
            role_wait(8 * DKV + nwarm, 8 * (DW - 1) + nwarm)
        else:
            role_wait(None, 8 * (DW - 1))
        A("s_barrier")
        m = t + DW
        def w_fn(m=m):
            if m < 8: issue_wq(m)
            else: issue_wo(m - 8, 0)
        run_jobs(jobs_qp(t), lambda: role_block(None, w_fn))
        adv_c(sWc, WBASE, NW)
    A(f"s_add_u32 s{sWqOff}, s{sWqOff}, 256")
    A("s_barrier")
    role_block(lambda: issue_kv(DKV), lambda: (issue_wo(DW, 0) if DW < 8 else None))
    A("s_nop 7"); A("s_nop 7")
    def q_pack():
        for f in range(4):
            for j in range(4):
                A(f"v_cvt_pk_bf16_f32 v{32+4*f+j+16}, v{QF+8*f+2*j}, v{QF+8*f+2*j+1}")
    q_pack()
    for f in range(4):
        A(f"ds_write_b128 v{vXown}, v[{48+4*f}:{51+4*f}] offset:{4096 + f*1024}")
    A("s_mov_b32 s70, 0")
    A("L_head:")

    for t in range(8):
        addr_A(True, True)
        if t == 0: A("s_waitcnt lgkmcnt(0)")
        role_wait(8 * (DKV - 1) + (8 if t == 0 else 0), 8 * (DW - 1) + (8 if t == 0 else 0))
        A("s_barrier")
        pre = None
        if t == 0:
            lskip = newlab("noo")
            A("s_cmp_eq_u32 s70, 0"); A(f"s_cbranch_scc1 {lskip}")
            for f in range(8):
                A(f"ds_read_b128 v[{OF+4*f}:{OF+4*f+3}], v{vXq} offset:{(f>>2)*16384 + (f&3)*1024}")
            A(f"{lskip}:")
            for f in range(8):
                A(f"ds_read_b128 v[{QF+4*f}:{QF+4*f+3}], v{vXq} offset:{(f>>2)*16384 + (f&3)*1024 + 4096}")
            A("s_waitcnt lgkmcnt(0)")
        def kv_fn(t=t): issue_kv(t + DKV)
        def w_fn(t=t):
            m = t + DW
            if m < 8: issue_wo(m, 0)
            else: issue_wq(m - 8)
        if t == 0:
            dma = None
        else:
            def dma(kv_fn=kv_fn, w_fn=w_fn): role_block(kv_fn, w_fn)
        run_jobs(interleave(jobs_op(t), jobs_qk(t)), dma)
        adv_c(sKVc, KVBASE, NKV); adv_c(sWc, WBASE, NW)

    A(f"v_max_f32 v{vM}, v{S0}, v{S0+1}"); A(f"v_max_f32 v{vM2}, v{S0+2}, v{S0+3}")
    k = 4
    tog = 0
    while k < 128:
        r = vM if tog == 0 else vM2
        A(f"v_max3_f32 v{r}, v{r}, v{S0+k}, v{S0+k+1}")
        k += 2; tog ^= 1
    A(f"v_max_f32 v{vM}, v{vM}, v{vM2}")
    A(f"v_mov_b32 v{vM2}, v{vM}")
    A("s_nop 1")
    A(f"v_permlane32_swap_b32 v{vM}, v{vM2}")
    A("s_nop 1")
    A(f"v_max_f32 v{vM}, v{vM}, v{vM2}")
    A(f"ds_write_b32 v{vX4own}, v{vM}")
    A("s_waitcnt lgkmcnt(0)")
    A("s_barrier")
    A(f"ds_read_b32 v{vM2}, v{vX4par}")
    role_block(lambda: issue_kv(8 + DKV), lambda: (issue_wq(DW) if DW < 8 else None))
    A("s_waitcnt lgkmcnt(0)")
    A(f"v_max_f32 v{vM}, v{vM}, v{vM2}")
    A(f"v_mul_f32 v{vM}, s{sC}, v{vM}")
    A(f"v_mov_b32 v{vSum}, 0"); A(f"v_mov_b32 v{vSum2}, 0")
    for t in range(8):
        b = S0 + 16 * t
        for r in range(16): A(f"v_fma_f32 v{b+r}, v{b+r}, s{sC}, -v{vM}")
        for r in range(16): A(f"v_exp_f32 v{b+r}, v{b+r}")
        for j in range(8):
            A(f"v_add_f32 v{vSum}, v{vSum}, v{b+2*j}")
            A(f"v_add_f32 v{vSum2}, v{vSum2}, v{b+2*j+1}")
            A(f"v_cvt_pk_bf16_f32 v{S0+8*t+j}, v{b+2*j}, v{b+2*j+1}")
    A(f"v_add_f32 v{vSum}, v{vSum}, v{vSum2}")
    A(f"v_mov_b32 v{vSum2}, v{vSum}")
    A("s_nop 1")
    A(f"v_permlane32_swap_b32 v{vSum}, v{vSum2}")
    A("s_nop 1")
    A(f"v_add_f32 v{vSum}, v{vSum}, v{vSum2}")
    A(f"ds_write_b32 v{vX4own}, v{vSum} offset:1024")

    for t in range(8):
        addr_B(True, True)
        if t == 0: A("s_waitcnt lgkmcnt(0)")
        role_wait(8 * (DKV - 1) + (8 if t == 0 else 0), 8 * (DW - 1) + (8 if t == 0 else 0))
        A("s_barrier")
        pre = [f"ds_read_b32 v{vPS}, v{vX4par} offset:1024"] if t == 0 else None
        def kv_fn(t=t): issue_kv(8 + t + DKV)
        def w_fn(t=t):
            m = 8 + t + DW
            if m < 16: issue_wq(m - 8)
            else: issue_wo(m - 16, 1)
        dma = None if t == 0 else (lambda kv_fn=kv_fn, w_fn=w_fn: role_block(kv_fn, w_fn))
        run_jobs(interleave(jobs_pv(t), jobs_qp(t)), dma, pre)
        adv_c(sKVc, KVBASE, NKV); adv_c(sWc, WBASE, NW)

    A(f"v_add_f32 v{vSum}, v{vSum}, v{vPS}")
    A(f"v_rcp_f32 v{vRinv}, v{vSum}")
    A(f"s_add_u32 s{sKVoff}, s{sKVoff}, 131072")
    A(f"s_add_u32 s{sWoOff}, s{sWoOff}, 131072")
    A(f"s_add_u32 s{sWqOff}, s{sWqOff}, 256")
    A(f"s_add_u32 s{sH}, s{sH}, 1")
    A(f"s_cmp_ge_u32 s{sH}, 7"); A(f"s_cselect_b32 s{sWqOff}, 0x80000000, s{sWqOff}")
    A("s_mov_b32 s70, 1")
    A("s_nop 7"); A("s_nop 3")
    for k in range(8):
        A(f"ds_write_b128 v{vXpar}, v[{OACC+32+4*k}:{OACC+35+4*k}] offset:{k*1024}")
    q_pack()
    A("s_waitcnt lgkmcnt(0)")
    A("s_barrier")
    for k in range(8):
        A(f"ds_read_b128 v[{4*k}:{4*k+3}], v{vXown} offset:{k*1024}")
    role_block(lambda: issue_kv(DKV), lambda: (issue_wo(DW, 0) if DW < 8 else None))
    A("s_waitcnt lgkmcnt(0)")
    for k in range(32):
        A(f"v_add_f32 v{OACC+k}, v{OACC+k}, v{k}")
    for k in range(32):
        A(f"v_mul_f32 v{OACC+k}, v{OACC+k}, v{vRinv}")
    for f in range(4):
        for j in range(4):
            A(f"v_cvt_pk_bf16_f32 v{32+4*f+j}, v{OACC+8*f+2*j}, v{OACC+8*f+2*j+1}")
    for f in range(4):
        A(f"ds_write_b128 v{vXown}, v[{32+4*f}:{35+4*f}] offset:{f*1024}")
    for f in range(4):
        A(f"ds_write_b128 v{vXown}, v[{48+4*f}:{51+4*f}] offset:{4096 + f*1024}")
    A(f"s_cmp_lt_u32 s{sH}, 8"); A("s_cbranch_scc1 L_head")

    for t in range(8):
        addr_A(False, True)
        if t == 0: A("s_waitcnt lgkmcnt(0)")
        issued = min(8, max(DW + 1, t + DW))
        role_wait(None, 8 * (issued - (t + 1)))
        A("s_barrier")
        if t == 0:
            for f in range(8):
                A(f"ds_read_b128 v[{OF+4*f}:{OF+4*f+3}], v{vXq} offset:{(f>>2)*16384 + (f&3)*1024}")
            A("s_waitcnt lgkmcnt(0)")
        m = t + DW
        dma = None
        if t > 0 and m < 8:
            dma = lambda m=m: role_block(None, lambda: issue_wo(m, 0))
        run_jobs(jobs_op(t), dma)
        adv_c(sWc, WBASE, NW)

    A(f"s_lshl_b32 s{sT0}, s{sBR}, 5"); A(f"s_add_u32 s{sT0}, s{sT0}, s{sB}"); A(f"s_lshl_b32 s{sT0}, s{sT0}, 2"); A(f"s_add_u32 s{sT0}, s{sT0}, s{sHG}")
    A(f"s_lshl_b32 s{sT0}, s{sT0}, 17"); A(f"s_lshl_b32 s{sT1}, s{sWave}, 15"); A(f"s_add_u32 s{sT0}, s{sT0}, s{sT1}")
    A(f"s_mov_b32 s{sXS}, s58"); A(f"s_mov_b32 s{sXS+1}, s59"); A(f"s_mov_b32 s{sXS+2}, 0x2000000"); A(f"s_mov_b32 s{sXS+3}, 0x20000")
    A("v_mbcnt_lo_u32_b32 v0, -1, 0"); A("v_mbcnt_hi_u32_b32 v0, -1, v0"); A("v_lshlrev_b32 v0, 4, v0")
    A("s_nop 7"); A("s_nop 3")
    for i in range(8):
        A(f"s_add_u32 s{sT1}, s{sT0}, {i*4096}")
        for a in range(4):
            r = AOUT + 16 * i + 4 * a
            A(f"buffer_store_dwordx4 a[{r}:{r+3}], v0, s[{sXS}:{sXS+3}], s{sT1} offen offset:{a*1024}")
    A("s_waitcnt vmcnt(0)")
    A("L_end:")
    A("s_endpgm")

    A(f".globl {RN}"); A(".p2align 8"); A(f".type {RN},@function"); A(f"{RN}:")
    A("s_cmp_ge_u32 s2, 512"); A("s_cbranch_scc1 L_rend")
    A("s_load_dwordx2 s[4:5], s[0:1], 96")
    A("s_load_dwordx2 s[6:7], s[0:1], 80")
    A("s_lshr_b32 s16, s2, 3")
    A("s_and_b32 s17, s2, 7")
    A("v_and_b32 v1, 63, v0"); A("v_lshrrev_b32 v2, 6, v0")
    A("v_lshlrev_b32 v3, 4, v1"); A("v_lshl_add_u32 v3, v2, 15, v3")
    A("s_lshl_b32 s18, s16, 19"); A("s_lshl_b32 s19, s17, 12"); A("s_add_u32 s18, s18, s19")
    A("s_waitcnt lgkmcnt(0)")
    A("s_mov_b32 s8, s4"); A("s_mov_b32 s9, s5"); A("s_mov_b32 s10, 0x2000000"); A("s_mov_b32 s11, 0x20000")
    A("s_mov_b32 s12, s6"); A("s_mov_b32 s13, s7"); A("s_mov_b32 s14, 0x400000"); A("s_mov_b32 s15, 0x20000")
    for hg in range(4):
        A(f"s_add_u32 s19, s18, {hg*131072}")
        for a in range(4):
            r = 8 + 16 * hg + 4 * a
            A(f"buffer_load_dwordx4 v[{r}:{r+3}], v3, s[8:11], s19 offen offset:{a*1024}")
    A("s_and_b32 s20, s16, 31"); A("s_lshr_b32 s21, s16, 5")
    A("s_lshl_b32 s20, s20, 17")
    A("s_lshl_b32 s21, s21, 10"); A("s_add_u32 s20, s20, s21")
    A("s_lshl_b32 s21, s17, 6"); A("s_add_u32 s20, s20, s21")
    A("v_and_b32 v4, 31, v1"); A("v_and_b32 v5, 1, v2"); A("v_lshl_add_u32 v4, v5, 5, v4"); A("v_lshlrev_b32 v4, 11, v4")
    A("v_lshrrev_b32 v5, 1, v2"); A("v_lshl_add_u32 v4, v5, 9, v4")
    A("v_lshrrev_b32 v5, 5, v1"); A("v_lshl_add_u32 v4, v5, 4, v4")
    A("s_waitcnt vmcnt(8)")
    for k in range(16): A(f"v_add_f32 v{8+k}, v{8+k}, v{24+k}")
    A("s_waitcnt vmcnt(0)")
    for k in range(16): A(f"v_add_f32 v{40+k}, v{40+k}, v{56+k}")
    for k in range(16): A(f"v_add_f32 v{8+k}, v{8+k}, v{40+k}")
    for j in range(8): A(f"v_cvt_pk_bf16_f32 v{24+j}, v{8+2*j}, v{9+2*j}")
    A("buffer_store_dwordx4 v[24:27], v4, s[12:15], s20 offen")
    A("buffer_store_dwordx4 v[28:31], v4, s[12:15], s20 offen offset:32")
    A("s_waitcnt vmcnt(0)")
    A("L_rend:")
    A("s_endpgm")

    A('.section .rodata,"a"')
    A(".p2align 6"); A(f".amdhsa_kernel {KN}")
    A("  .amdhsa_next_free_vgpr 512"); A("  .amdhsa_next_free_sgpr 102"); A("  .amdhsa_accum_offset 256")
    A("  .amdhsa_group_segment_fixed_size 0"); A("  .amdhsa_kernarg_size 104"); A("  .amdhsa_user_sgpr_count 2")
    A("  .amdhsa_user_sgpr_kernarg_segment_ptr 1"); A("  .amdhsa_system_sgpr_workgroup_id_x 1"); A(".end_amdhsa_kernel")
    A(".p2align 6"); A(f".amdhsa_kernel {RN}")
    A("  .amdhsa_next_free_vgpr 72"); A("  .amdhsa_next_free_sgpr 32"); A("  .amdhsa_accum_offset 72")
    A("  .amdhsa_group_segment_fixed_size 0"); A("  .amdhsa_kernarg_size 104"); A("  .amdhsa_user_sgpr_count 2")
    A("  .amdhsa_user_sgpr_kernarg_segment_ptr 1"); A("  .amdhsa_system_sgpr_workgroup_id_x 1"); A(".end_amdhsa_kernel")
    return "\n".join(x for x in L if x is not None) + "\n"

if __name__ == "__main__":
    out = sys.argv[1] if len(sys.argv) > 1 else "k1.s"
    open(out, "w").write(gen())
```

```python
import sys, struct, math

KN = "concat_heads__mha_block_cached__mha_block_cached__near_ridge_kernel"
RN = "mha_reduce_kernel"

class Cfg:
    NKV = 5
    NW = 3
    warm = True
    wmode = 'bulkP'
    prof = False
    prof_head = 3
    dma_pos = [0, 2, 4, 6, 8, 10, 12, 14]
    stflags = ''
    wplan = [(3, 0, 4), (5, 4, 10), (7, 10, 14)]

def f32bits(x):
    return struct.unpack("<I", struct.pack("<f", x))[0]

NB = 8
QF = 128; QA = 160
ACC = [32, 48, 160, 176]
def Sreg(t): return 16 * t
def Preg(t): return 8 * t if t < 4 else 64 + 8 * (t - 4)
FB = 192; ADK = 224; ADW = 228
vKB, vVB, vWQB, vWOB = 232, 233, 234, 235
vDK, vDV, vDWO, vDWQ, vDt = 236, 237, 238, 239, 240
vXown, vXq, vDummy = 241, 242, 243
OFr = 244
vMx, vMc, vL, vAl, vS0, vS1, vS2, vS3 = 248, 249, 250, 251, 252, 253, 254, 255
AOUT = 0; AX = 128

sK, sV, sWQ, sWO, sXS = 8, 12, 16, 20, 24
sRole, sH, sKVoff, sWoOff, sWqOff = 28, 29, 30, 31, 32
sPkv, sPw, sKVc, sWc, sC, sT0, sT1, sWave, sHW = 33, 34, 60, 61, 62, 63, 64, 65, 66
sB, sHG, sBR, sW4 = 67, 68, 69, 71
sWarmQ, sWarmO = 74, 75
sST = 76

class Gen:
    def __init__(self, cfg):
        self.cfg = cfg; self.req = {}; self.L = []; self.emit = False; self.q = []; self.lab = 0; self.cnt = 0
        self.nst = 0
    def A(self, s):
        if self.emit: self.L.append(s)
    def newlab(self, p):
        self.lab += 1
        return f"L_{p}_{self.lab}"
    def ds(self, s):
        self.A(s); self.cnt += 1
    def vm(self, s, tag):
        self.A(s); self.q.append(tag)
    def vwait(self, site, tags):
        idx = max([i for i, t in enumerate(self.q) if t in tags], default=-1)
        c = len(self.q) - 1 - idx
        if not self.emit: self.req[site] = min(self.req.get(site, 63), c)
        else: self.A(f"s_waitcnt vmcnt({min(self.req[site], 63)})")
    def stamp(self, inloop):
        if not self.cfg.prof or not self.emit: return
        if bool(inloop) != (self.cfg.prof == 'loop'): return
        A = self.A
        k = self.nst; self.nst += 1
        assert k < 26
        if inloop:
            l = self.newlab("st")
            A(f"s_cmp_lg_u32 s{sH}, {self.cfg.prof_head}"); A(f"s_cbranch_scc1 {l}")
        A("s_memtime s[72:73]"); A("s_waitcnt lgkmcnt(0)")
        A(f"s_mov_b32 s{sST+k}, s72")
        if inloop: A(f"{l}:")

def gen(cfg=Cfg):
    g = Gen(cfg)
    NKV, NW = cfg.NKV, cfg.NW
    DKV, DW = NKV - 1, NW - 1
    assert DKV >= DW + 2 and NW == 3 and NKV == 5
    KVBASE = 0; WBASE = NKV * 16384; XBASE = WBASE + NW * 16384; LDS = XBASE + 32768
    assert LDS <= 163840 and XBASE % 32768 == 0
    XST = KVBASE + 16384
    PSLOT = [WBASE, WBASE + 16384, WBASE + 32768, XBASE, XBASE + 16384, WBASE, WBASE + 16384, WBASE + 32768]
    A = g.A

    def adv(reg, base, n):
        return [f"s_add_u32 s{reg}, s{reg}, 16384", f"s_cmp_ge_u32 s{reg}, {base + n*16384}", f"s_cselect_b32 s{reg}, {base}, s{reg}"]
    def advp(reg, base, n):
        return [f"s_add_u32 s{reg}, s{reg}, 16384", f"s_cmp_ge_u32 s{reg}, {base + n*16384}", f"s_cselect_b32 s{sT1}, {n*16384}, 0", f"s_sub_u32 s{reg}, s{reg}, s{sT1}"]
    def vo_x(base, i):
        if i == 0: return ["s_nop 0"], base
        return [f"v_xor_b32 v{vDt}, {i<<6}, v{base}"], vDt
    def dma_kv(m, tag):
        tt, carry = m & 15, m >> 4
        srd = sK if tt < 8 else sV
        off = (tt & 7) * 16384 + carry * 131072
        gs = []
        for i in range(4):
            if tt < 8: p2, vo = vo_x(vDK, i)
            else: p2, vo = ["s_nop 0"], vDV
            pre = [f"s_add_u32 s{sT0}, s{sKVoff}, {off}", f"s_mov_b32 m0, s{sPkv}"] + p2
            ld = f"buffer_load_dwordx4 v{vo}, s[{srd}:{srd+3}], s{sT0} offen offset:{i*1024} nt lds"
            gs.append((pre, ld, advp(sPkv, KVBASE, NKV) if i == 3 else [], tag))
        return gs
    def dma_wo(tile, tag, slot=None):
        gs = []
        for i in range(4):
            p2, vo = vo_x(vDWO, i)
            m0 = f"s_mov_b32 m0, s{sPw}" if slot is None else f"s_add_u32 m0, s{sW4}, {slot}"
            pre = [f"s_add_u32 s{sT0}, s{sWoOff}, {tile*16384}", m0] + p2
            ld = f"buffer_load_dwordx4 v{vo}, s[{sWO}:{sWO+3}], s{sT0} offen offset:{i*1024} lds"
            gs.append((pre, ld, advp(sPw, WBASE, NW) if (i == 3 and slot is None) else [], tag))
        return gs
    def dma_wq(tile, dh, tag, slot=None):
        gs = []
        for i in range(4):
            m0 = f"s_add_u32 m0, s{sPw}, {i*1024}" if slot is None else f"s_add_u32 m0, s{sW4}, {slot + i*1024}"
            pre = [f"s_add_u32 s{sT0}, s{sWqOff}, {tile*524288 + i*32768 + dh*256}", m0, "s_nop 0"]
            ld = f"buffer_load_dwordx4 v{vDWQ}, s[{sWQ}:{sWQ+3}], s{sT0} offen lds"
            gs.append((pre, ld, advp(sPw, WBASE, NW) if (i == 3 and slot is None) else [], tag))
        return gs
    def warm_wq(dh):
        return ([f"s_add_u32 s{sT0}, s{sWqOff}, s{sWarmQ}"] + ([f"s_add_u32 s{sT0}, s{sT0}, {dh*256}"] if dh else []),
                f"buffer_load_dword v{vDummy}, v{vDWQ}, s[{sWQ}:{sWQ+3}], s{sT0} offen", [], "warm")
    def warm_wo(dh):
        return ([f"s_add_u32 s{sT0}, s{sWoOff}, s{sWarmO}", f"s_add_u32 s{sT0}, s{sT0}, {dh*131072}"],
                f"buffer_load_dword v{vDummy}, v{vDWO}, s[{sWO}:{sWO+3}], s{sT0} offen", [], "warm")
    def emit_dma(gr):
        pre, ld, post, tag = gr
        for s in pre: A(s)
        g.vm(ld, tag)
        for s in post: A(s)
    def dma_w_loop(h, tg):
        m = tg + DW
        tag = ("W", 8 + 16 * h + m)
        if m < 8: return dma_wq(m, 0, tag)
        if m < 16: return dma_wo(m - 8, tag)
        return dma_wq(m - 16, 1, tag)
    def dma_kv_loop(h, tg):
        return dma_kv(tg + DKV, ("KV", 16 * h + tg + DKV))

    def jobs_qk(t):
        js = []
        for s in range(8):
            def rd(dst, s=s):
                if s == 0: return [('d', f"ds_read_b128 v[{dst}:{dst+3}], v{ADK}")]
                tmp = ADK + 1 + (s & 1)
                return [('v', f"v_xor_b32 v{tmp}, {s<<5}, v{ADK}"), ('d', f"ds_read_b128 v[{dst}:{dst+3}], v{tmp}")]
            def mf(a, s=s, t=t):
                d = Sreg(t)
                c = "0" if s == 0 else f"v[{d}:{d+15}]"
                return f"v_mfma_f32_32x32x16_bf16 v[{d}:{d+15}], v[{a}:{a+3}], v[{QF+4*s}:{QF+4*s+3}], {c}"
            js.append((rd, mf))
        return js
    def jobs_op(t, breg=OFr):
        js = []
        for i in range(8):
            def rd(dst, i=i):
                return [('d', f"ds_read_b64_tr_b16 v[{dst+2*h}:{dst+2*h+1}], v{ADW+(i&3)} offset:{h*4096 + (i>>2)*256}") for h in range(2)]
            def mf(a, i=i):
                d = AOUT + 16 * i
                return f"v_mfma_f32_32x32x16_bf16 a[{d}:{d+15}], v[{a}:{a+3}], v[{breg}:{breg+3}], a[{d}:{d+15}]"
            js.append((rd, mf))
        return js
    def jobs_pv(t):
        js = []
        for (u, i) in [(0, 0), (0, 1), (1, 0), (1, 1), (0, 2), (0, 3), (1, 2), (1, 3)]:
            def rd(dst, i=i, u=u):
                return [('d', f"ds_read_b64_tr_b16 v[{dst+2*h}:{dst+2*h+1}], v{ADK+i} offset:{u*4096 + h*2048}") for h in range(2)]
            def mf(a, i=i, u=u, t=t):
                d = ACC[i]
                c = "0" if (t == 0 and u == 0) else f"v[{d}:{d+15}]"
                p = Preg(t) + 4 * u
                return f"v_mfma_f32_32x32x16_bf16 v[{d}:{d+15}], v[{a}:{a+3}], v[{p}:{p+3}], {c}"
            js.append((rd, mf))
        return js
    def jobs_qp(t):
        js = []
        for s in range(4):
            for i in range(2):
                def rd(dst, i=i, s=s):
                    return [('d', f"ds_read_b64_tr_b16 v[{dst+2*h}:{dst+2*h+1}], v{ADW+i} offset:{s*4096 + h*1024}") for h in range(2)]
                def mf(a, i=i, s=s, t=t):
                    d = QA + 16 * i
                    c = "0" if (t == 0 and s == 0) else f"v[{d}:{d+15}]"
                    x = AX + 4 * (4 * t + s)
                    return f"v_mfma_f32_32x32x16_bf16 v[{d}:{d+15}], v[{a}:{a+3}], a[{x}:{x+3}], {c}"
                js.append((rd, mf))
        return js
    def addr_k(): return adv(sKVc, KVBASE, NKV) + [f"v_add_u32 v{ADK}, s{sKVc}, v{vKB}"]
    def addr_v(): return adv(sKVc, KVBASE, NKV) + [f"v_add_u32 v{ADK}, s{sKVc}, v{vVB}"] + [f"v_xor_b32 v{ADK+i}, {i<<6}, v{ADK}" for i in range(1, 4)]
    def addr_wo(): return adv(sWc, WBASE, NW) + [f"v_add_u32 v{ADW}, s{sWc}, v{vWOB}"] + [f"v_xor_b32 v{ADW+i}, {i<<6}, v{ADW}" for i in range(1, 4)]
    def addr_wq(): return adv(sWc, WBASE, NW) + [f"v_add_u32 v{ADW}, s{sWc}, v{vWQB}", f"v_xor_b32 v{ADW+1}, 64, v{ADW}"]

    pos = {}
    def put(kind, text):
        if kind == 'd': g.ds(text)
        else: A(text)
    def issue_reads(job, b):
        for k, s in job[0](FB + 4 * b): put(k, s)
        pos[b] = g.cnt
    def cost(it):
        return 2 if it[2].startswith(("v_exp", "v_rcp")) else 1

    def full_step(kvjobs, wjobs, nxt_kvjobs, nxt_kv_addr, nxt_w_addr, dmas, extras=(), head=(), fixed=None, drained=False):
        jobs = kvjobs + wjobs
        if drained:
            for b in range(NB): pos[b] = -1000
        for k, s in head: put(k, s)
        dq = list(dmas); ex = list(extras); fixed = fixed or {}
        for j in range(16):
            b = j % NB
            w = g.cnt - pos[b]
            if w < 500: A(f"s_waitcnt lgkmcnt({min(w, 15)})")
            A(jobs[j][1](FB + 4 * b))
            if j < 8: issue_reads(jobs[j + 8], b)
            if j == 7:
                for s in nxt_kv_addr: A(s)
                for s in nxt_w_addr: A(s)
            if j >= 8 and nxt_kvjobs: issue_reads(nxt_kvjobs[j - 8], b)
            for k, s in fixed.get(j, []): put(k, s)
            if j in cfg.dma_pos and dq: emit_dma(dq.pop(0))
            rem = sum(cost(e) for e in ex)
            quota = math.ceil(rem / (16 - j))
            used = 0
            while ex and ex[0][0] <= j and used < quota:
                e = ex.pop(0); put(e[1], e[2]); used += cost(e)
        for d in dq: emit_dma(d)
        for e in ex: put(e[1], e[2])

    def half_step(wjobs, dmas):
        for j in range(8): issue_reads(wjobs[j], j)
        dq = list(dmas)
        for j in range(8):
            w = g.cnt - pos[j]
            if w < 500: A(f"s_waitcnt lgkmcnt({min(w, 15)})")
            A(wjobs[j][1](FB + 4 * j))
            if dq and (j % 2 == 0 or len(dq) > 8 - j): emit_dma(dq.pop(0))
            if len(dq) > 2 * (8 - j): emit_dma(dq.pop(0))
        for d in dq: emit_dma(d)

    def x_max(t, first=False, e=0):
        b = Sreg(t); out = []
        if first:
            out.append((e, 'v', f"v_max_f32 v{vMx}, v{b}, v{b+1}")); k0 = 2
        else: k0 = 0
        for k in range(k0, 16, 2): out.append((e, 'v', f"v_max3_f32 v{vMx}, v{vMx}, v{b+k}, v{b+k+1}"))
        return out
    def x_crossmax(e=0):
        return [(e, 'v', f"v_mov_b32 v{vAl}, v{vMx}"), (e, 'v', "s_nop 1"), (e, 'v', f"v_permlane32_swap_b32 v{vMx}, v{vAl}"),
                (e, 'v', f"v_max_f32 v{vMx}, v{vMx}, v{vAl}")]
    def x_exp(t, e=0):
        b = Sreg(t); p = Preg(t); out = []
        for j in range(9):
            if j < 8:
                out += [(e, 'v', f"v_fma_f32 v{b+2*j}, v{b+2*j}, s{sC}, -v{vMc}"), (e, 'v', f"v_fma_f32 v{b+2*j+1}, v{b+2*j+1}, s{sC}, -v{vMc}"),
                        (e, 'v', f"v_exp_f32 v{b+2*j}, v{b+2*j}"), (e, 'v', f"v_exp_f32 v{b+2*j+1}, v{b+2*j+1}")]
            else:
                out += [(e, 'v', "s_nop 0")]
            if j > 0:
                k = j - 1
                out += [(e, 'v', f"v_add_f32 v{vL}, v{vL}, v{b+2*k}"), (e, 'v', f"v_add_f32 v{vL}, v{vL}, v{b+2*k+1}"),
                        (e, 'v', f"v_cvt_pk_bf16_f32 v{p+k}, v{b+2*k}, v{b+2*k+1}")]
        return out
    def x_factors(e=0):
        return [(e, 'v', s) for s in [
            f"v_max_f32 v{vAl}, v{vS0}, v{vS2}", f"v_sub_f32 v{vS0}, v{vS0}, v{vAl}", f"v_sub_f32 v{vS2}, v{vS2}, v{vAl}",
            f"v_exp_f32 v{vS0}, v{vS0}", f"v_exp_f32 v{vS2}, v{vS2}", "s_nop 0",
            f"v_mul_f32 v{vS1}, v{vS1}, v{vS0}", f"v_fma_f32 v{vS1}, v{vS3}, v{vS2}, v{vS1}", f"v_rcp_f32 v{vS1}, v{vS1}", "s_nop 0",
            f"v_mul_f32 v{vS0}, v{vS0}, v{vS1}", f"v_mul_f32 v{vS1}, v{vS2}, v{vS1}"]]
    def x_merge(i, e=0):
        a = ACC[i]; r = 64 + 16 * i; p = 96 + 8 * i; out = []
        for j in range(8):
            for k in (2 * j, 2 * j + 1):
                out += [(e, 'v', f"v_mul_f32 v{a+k}, v{a+k}, v{vS0}"), (e, 'v', f"v_fma_f32 v{a+k}, v{r+k}, v{vS1}, v{a+k}")]
            out.append((e, 'v', f"v_cvt_pk_bf16_f32 v{p+j}, v{a+2*j}, v{a+2*j+1}"))
            if j in (3, 7):
                f = 2 * i + (j >> 2)
                out.append((e, 'd', f"ds_write_b128 v{vXown}, v[{96+4*f}:{99+4*f}] offset:{f*1024}"))
        return out
    def h_partial_write():
        out = [('v', f"v_xor_b32 v{vDt}, 0x4000, v{vXown}")]
        for k in range(8):
            r = ACC[2 + (k >> 2)] + 4 * (k & 3)
            out.append(('d', f"ds_write_b128 v{vDt}, v[{r}:{r+3}] offset:{k*1024}"))
        return out
    def h_partial_read():
        return [('d', f"ds_read_b128 v[{64+4*k}:{67+4*k}], v{vXown} offset:{k*1024}") for k in range(8)]
    def qpack(f):
        return [('v', f"v_cvt_pk_bf16_f32 v{QF+4*f+j}, v{QA+8*f+2*j}, v{QA+8*f+2*j+1}") for j in range(4)]
    def qwrite():
        return [('d', f"ds_write_b128 v{vXown}, v[{QF+4*f}:{QF+4*f+3}] offset:{4096 + f*1024}") for f in range(4)]
    def qread():
        return [('d', f"ds_read_b128 v[{QF+4*f}:{QF+4*f+3}], v{vXq} offset:{(f>>2)*16384 + (f&3)*1024 + 4096}") for f in range(8)]

    def prologue():
        A(f"; @launch kernel={KN} grid=(256,1,1) block=(256,1,1) lds={LDS}")
        A(f"; @launch kernel={RN} grid=(512,1,1) block=(256,1,1) lds=0")
        A('.amdgcn_target "amdgcn-amd-amdhsa--gfx950"')
        A(".text")
        A(f".globl {KN}"); A(".p2align 8"); A(f".type {KN},@function"); A(f"{KN}:")
        A("s_cmp_ge_u32 s2, 256"); A("s_cbranch_scc1 L_end")
        A("s_load_dwordx8 s[36:43], s[0:1], 0")
        A("s_load_dwordx2 s[44:45], s[0:1], 32")
        A("s_load_dwordx8 s[48:55], s[0:1], 40")
        A("s_load_dwordx2 s[56:57], s[0:1], 72")
        A("s_load_dwordx2 s[58:59], s[0:1], 96")
        A(f"s_lshr_b32 s{sBR}, s2, 2"); A(f"s_and_b32 s{sBR}, s{sBR}, 1")
        A(f"s_and_b32 s{sHG}, s2, 3")
        A(f"s_lshr_b32 s{sB}, s2, 3")
        A("v_lshrrev_b32 v1, 6, v0")
        A("v_and_b32 v2, 63, v0")
        A(f"v_readfirstlane_b32 s{sWave}, v1")
        A("v_lshrrev_b32 v10, 4, v2"); A("v_and_b32 v11, 15, v2")
        A("v_lshlrev_b32 v12, 2, v10"); A("v_xor_b32 v12, v12, v11"); A("v_lshlrev_b32 v12, 4, v12")
        A(f"v_lshl_add_u32 v{vDV}, v10, 8, v12")
        A(f"v_lshl_add_u32 v{vDWQ}, v10, 13, v12")
        A("v_xor_b32 v13, v10, v11"); A("v_lshlrev_b32 v13, 4, v13"); A(f"v_lshl_add_u32 v{vDK}, v10, 8, v13")
        A(f"v_lshlrev_b32 v{vDWO}, 4, v2")
        A("s_waitcnt lgkmcnt(0)")
        A(f"s_cmp_eq_u32 s{sBR}, 0")
        for i in range(10):
            A(f"s_cselect_b32 s{36+i}, s{36+i}, s{48+i}")
        A(f"s_lshl_b32 s{sT0}, s{sB}, 22"); A(f"s_lshl_b32 s{sT1}, s{sHG}, 20"); A(f"s_add_u32 s{sT0}, s{sT0}, s{sT1}")
        A(f"s_add_u32 s{sK}, s38, s{sT0}"); A(f"s_addc_u32 s{sK+1}, s39, 0"); A(f"s_mov_b32 s{sK+2}, 0x100000"); A(f"s_mov_b32 s{sK+3}, 0x20000")
        A(f"s_add_u32 s{sV}, s40, s{sT0}"); A(f"s_addc_u32 s{sV+1}, s41, 0"); A(f"s_mov_b32 s{sV+2}, 0x100000"); A(f"s_mov_b32 s{sV+3}, 0x20000")
        A(f"s_lshl_b32 s{sT0}, s{sHG}, 11")
        A(f"s_add_u32 s{sWQ}, s42, s{sT0}"); A(f"s_addc_u32 s{sWQ+1}, s43, 0"); A(f"s_sub_u32 s{sWQ+2}, 0x400000, s{sT0}"); A(f"s_mov_b32 s{sWQ+3}, 0x20000")
        A(f"s_add_u32 s{sWO}, s44, s{sT1}"); A(f"s_addc_u32 s{sWO+1}, s45, 0"); A(f"s_mov_b32 s{sWO+2}, 0x100000"); A(f"s_mov_b32 s{sWO+3}, 0x20000")
        A(f"s_lshl_b32 s{sT0}, s{sB}, 16")
        A(f"s_add_u32 s{sXS}, s36, s{sT0}"); A(f"s_addc_u32 s{sXS+1}, s37, 0"); A(f"s_mov_b32 s{sXS+2}, 0x10000"); A(f"s_mov_b32 s{sXS+3}, 0x20000")
        A(f"s_lshr_b32 s{sRole}, s{sWave}, 1")
        A(f"s_and_b32 s{sHW}, s{sWave}, 1")
        A(f"s_lshl_b32 s{sW4}, s{sWave}, 12")
        A(f"s_mov_b32 s{sC}, 0x{f32bits(128 ** -0.5 * 1.4426950408889634):08x}")
        A(f"s_add_u32 s{sPkv}, s{sW4}, {KVBASE}"); A(f"s_add_u32 s{sPw}, s{sW4}, {WBASE}")
        A(f"s_mov_b32 s{sKVoff}, s{sW4}")
        A(f"s_sub_u32 s{sWoOff}, s{sW4}, 131072")
        A(f"s_lshl_b32 s{sWqOff}, s{sWave}, 17")
        A(f"s_mov_b32 s{sKVc}, {KVBASE + (NKV-1)*16384}"); A(f"s_mov_b32 s{sWc}, {WBASE + (NW-1)*16384}")
        A(f"s_mov_b32 s{sH}, 0")
        A(f"s_lshl_b32 s{sWarmQ}, s{sB}, 17"); A(f"s_lshl_b32 s{sT0}, s{sWave}, 15"); A(f"s_add_u32 s{sWarmQ}, s{sWarmQ}, s{sT0}")
        A(f"s_sub_u32 s{sWarmQ}, s{sWarmQ}, s{sWqOff}")
        A(f"s_lshl_b32 s{sWarmO}, s{sB}, 12"); A(f"s_lshl_b32 s{sT0}, s{sWave}, 10"); A(f"s_add_u32 s{sWarmO}, s{sWarmO}, s{sT0}")
        A(f"s_sub_u32 s{sWarmO}, s{sWarmO}, s{sW4}")
        g.stamp(0)
        if cfg.warm:
            emit_dma(warm_wq(0))
        A("v_lshrrev_b32 v13, 3, v2"); A("v_and_b32 v14, 7, v2"); A("v_lshrrev_b32 v15, 1, v13"); A("v_xor_b32 v14, v14, v15")
        A("v_lshlrev_b32 v14, 4, v14"); A("v_lshl_add_u32 v14, v13, 10, v14"); A("v_xor_b32 v15, 64, v14")
        A(f"s_lshl_b32 s4, s{sWave}, 14"); A(f"s_lshl_b32 s5, s{sWave}, 11")
        def xblk(t):
            for j in range(2):
                A(f"s_add_u32 s{sT0}, s4, {j*8192 + t*128}"); A(f"s_add_u32 m0, s5, {XST + t*8192 + j*1024}"); A("s_nop 0")
                g.vm(f"buffer_load_dwordx4 v{14+j}, s[{sXS}:{sXS+3}], s{sT0} offen lds", ("x", t))
        for m in range(8):
            xblk(m)
            if m < 5:
                for d in dma_wq(m, 0, ("W", m), PSLOT[m]): emit_dma(d)
            if m == 1 and cfg.warm: emit_dma(warm_wq(1))
        g.stamp(0)
        for d in dma_kv(0, ("KV", 0)): emit_dma(d)
        A("s_mov_b32 s6, 0x80000000")
        if cfg.warm:
            for tt, lo, hi in cfg.wplan:
                if tt == -1:
                    for d in warm_list()[lo:hi]: emit_dma(d)
        A("v_lshrrev_b32 v3, 5, v2"); A("v_and_b32 v4, 31, v2")
        A("v_bfe_u32 v5, v2, 4, 1"); A("v_bfe_u32 v6, v2, 2, 2"); A("v_and_b32 v7, 3, v2")
        A("v_and_b32 v8, 1, v7"); A("v_lshlrev_b32 v8, 1, v8"); A("v_lshrrev_b32 v9, 1, v7"); A("v_or_b32 v8, v8, v9")
        A("v_lshlrev_b32 v8, 3, v8"); A("v_lshl_add_u32 v8, v5, 5, v8")
        A(f"v_mov_b32 v9, s{sRole}")
        A("v_lshlrev_b32 v10, 5, v9"); A("v_lshl_add_u32 v10, v3, 2, v10"); A("v_add_u32 v10, v10, v6")
        A("v_lshlrev_b32 v11, 1, v9"); A("v_xor_b32 v11, v11, v6")
        A("v_lshlrev_b32 v10, 8, v10"); A("v_lshl_add_u32 v10, v11, 6, v10"); A(f"v_add_u32 v{vVB}, v10, v8")
        A("v_lshl_add_u32 v12, v3, 3, v6")
        A("v_lshlrev_b32 v10, 8, v12"); A("v_lshl_add_u32 v10, v11, 6, v10"); A(f"v_add_u32 v{vWQB}, v10, v8")
        A("v_lshlrev_b32 v10, 10, v12"); A("v_lshl_add_u32 v10, v9, 9, v10"); A("v_lshl_add_u32 v10, v6, 6, v10"); A(f"v_add_u32 v{vWOB}, v10, v8")
        A("v_lshl_add_u32 v10, v9, 5, v4"); A("v_and_b32 v11, 15, v4"); A("v_xor_b32 v11, v11, v3")
        A("v_lshlrev_b32 v10, 8, v10"); A(f"v_lshl_add_u32 v{vKB}, v11, 4, v10")
        A(f"s_lshl_b32 s{sT0}, s{sWave}, 13"); A(f"s_add_u32 s{sT0}, s{sT0}, {XBASE}")
        A(f"v_add_u32 v{vXown}, s{sT0}, v{vDWO}")
        A(f"s_lshl_b32 s{sT1}, s{sHW}, 13"); A(f"s_add_u32 s{sT1}, s{sT1}, {XBASE}")
        A(f"v_add_u32 v{vXq}, s{sT1}, v{vDWO}")
        A(f"s_lshl_b32 s{sT0}, s{sHW}, 12"); A(f"s_add_u32 s{sT0}, s{sT0}, {XST}")
        A("v_bfe_u32 v11, v4, 1, 3"); A("v_xor_b32 v11, v11, v3"); A("v_lshlrev_b32 v11, 4, v11")
        A("v_lshl_add_u32 v11, v4, 7, v11"); A(f"v_add_u32 v16, s{sT0}, v11")
        for s in range(1, 4): A(f"v_xor_b32 v{16+s}, {s<<5}, v16")
        for i in range(128): A(f"v_accvgpr_write_b32 a{AOUT+i}, 0")
        for i in range(32): A(f"v_mov_b32 v{32+i}, 0")
        A(f"v_mov_b32 v{vS0}, 0"); A(f"v_mov_b32 v{vS1}, 1.0"); A(f"v_mov_b32 v{vS2}, 0"); A(f"v_mov_b32 v{vS3}, 1.0")
        g.stamp(0)

    def warm_list():
        pad = ([], f"buffer_load_dword v{vDummy}, v{vDWO}, s[{sWO}:{sWO+3}], s6 offen", [], "pad")
        return [warm_wo(1), warm_wq(2), warm_wo(2), warm_wq(3), warm_wo(3), warm_wq(4), warm_wo(4), warm_wq(5), warm_wo(5), warm_wq(6),
              warm_wo(6), warm_wq(7), warm_wo(7), warm_wo(8), pad, pad, pad, pad]
    def stage_P():
        wl = warm_list()
        wl_old = [warm_wo(1), warm_wq(2), warm_wo(2), warm_wq(3), warm_wo(3), warm_wq(4), warm_wo(4), warm_wq(5), warm_wo(5), warm_wq(6),
              warm_wo(6), warm_wq(7), warm_wo(7), warm_wo(8)]
        for t in range(8):
            A(f"v_add_u32 v{ADW}, {PSLOT[t]}, v{vWQB}"); A(f"v_xor_b32 v{ADW+1}, 64, v{ADW}")
            g.vwait(("P", t), {("W", t), ("x", t)})
            A("s_barrier")
            g.stamp(0)
            for s in range(4):
                g.ds(f"ds_read_b128 a[{AX+16*t+4*s}:{AX+16*t+4*s+3}], v{16+s} offset:{t*8192}")
            dm = []
            if 1 <= t <= 3: dm = dma_wq(t + 4, 0, ("W", t + 4), PSLOT[t + 4])
            if t >= 6: dm = dma_wq(t - 6, 1, ("W", t + 2))
            if t in (2, 4, 6): dm += dma_kv(t // 2, ("KV", t // 2))
            if cfg.warm:
                for tt, lo, hi in cfg.wplan:
                    if t == tt: dm += wl[lo:hi]
            half_step(jobs_qp(t), dm)
        A(f"s_add_u32 s{sWqOff}, s{sWqOff}, 256")
        for s in addr_k(): A(s)
        for s in addr_wq(): A(s)
        A("s_nop 7")
        for f in range(4):
            for k, s in qpack(f): put(k, s)
        for k, s in qwrite(): put(k, s)
        for i in range(32): A(f"v_mov_b32 v{QA+i}, 0")
        A("s_waitcnt lgkmcnt(0)")
        g.vwait(("PP",), {("KV", 0)})
        A("s_barrier")
        for k, s in qread(): put(k, s)
        js = jobs_qk(0)
        for j in range(8): issue_reads(js[j], j)
        A("s_waitcnt lgkmcnt(0)")
        g.stamp(0)
        A("L_head:")

    def head(h):
        for t in range(8):
            g.vwait(("A", t), {("W", 8 + 16 * h + t), ("KV", 16 * h + t + 1)})
            A("s_barrier")
            g.stamp(1)
            dm = dma_w_loop(h, t) + dma_kv_loop(h, t)
            hd = []; ex = []
            if t == 0: hd = h_partial_write(); ex = x_factors()
            if t == 1: hd = h_partial_read(); ex = x_max(0, first=True) + x_merge(0, e=8)
            if t == 2: ex = x_merge(1) + x_max(1)
            if t == 3: ex = x_max(2)
            if t == 4:
                ex = x_max(3) + x_crossmax() + [(0, 'v', f"v_mul_f32 v{vMc}, s{sC}, v{vMx}"), (0, 'v', f"v_mov_b32 v{vL}, 0")] + x_exp(0)
            if t >= 5: ex = x_exp(t - 4) + x_max(t - 1)
            if t < 7: full_step(jobs_qk(t), jobs_qp(t), jobs_qk(t + 1), addr_k(), addr_wq(), dm, ex, hd)
            else: full_step(jobs_qk(t), jobs_qp(t), jobs_pv(0), addr_v(), addr_wo(), dm, ex, hd)
        for t in range(8):
            g.vwait(("B", t), {("W", 16 + 16 * h + t), ("KV", 16 * h + 8 + t + 1)})
            A("s_barrier")
            g.stamp(1)
            dm = dma_w_loop(h, 8 + t) + dma_kv_loop(h, 8 + t)
            hd = [('d', f"ds_read_b128 v[{OFr}:{OFr+3}], v{vXq} offset:{(t>>2)*16384 + (t&3)*1024}")]
            ex = []; fx = None
            if t == 0:
                fx = {0: qpack(0), 1: qpack(1), 2: qpack(2), 3: qpack(3), 4: qwrite()}
                ex = x_max(7, e=5) + x_crossmax(5) + [(5, 'v', s) for s in [
                    f"v_mul_f32 v{vS2}, s{sC}, v{vMx}", f"v_sub_f32 v{vAl}, v{vMc}, v{vS2}", f"v_exp_f32 v{vAl}, v{vAl}",
                    f"v_mov_b32 v{vMc}, v{vS2}", f"v_mul_f32 v{vL}, v{vL}, v{vAl}"]]
            if t == 1: hd += qread(); ex = x_exp(4)
            if t == 2: ex = x_exp(5)
            if t == 3:
                for i, e in [(0, 5), (1, 6), (2, 9), (3, 10)]:
                    ex += [(e, 'v', f"v_mul_f32 v{ACC[i]+k}, v{ACC[i]+k}, v{vAl}") for k in range(16)]
            if t == 4: ex = x_exp(6)
            if t == 5: ex = x_exp(7)
            if t == 6:
                fx = {0: [('v', f"v_mov_b32 v{vAl}, v{vL}"), ('v', f"v_mov_b32 v{vS0}, v{vMc}"), ('v', "s_nop 0"),
                          ('v', f"v_permlane32_swap_b32 v{vL}, v{vAl}")],
                      1: [('v', f"v_add_f32 v{vS1}, v{vL}, v{vAl}"), ('d', f"ds_write_b64 v{vXown}, v[{vS0}:{vS1}] offset:4096")]}
            if t == 7:
                hd += [('v', f"v_xor_b32 v{vDt}, 0x4000, v{vXown}"), ('d', f"ds_read_b64 v[{vS2}:{vS3}], v{vDt} offset:4096")]
            if t < 7: full_step(jobs_pv(t), jobs_op(t), jobs_pv(t + 1), addr_v(), addr_wo(), dm, ex, hd, fx)
            else: full_step(jobs_pv(t), jobs_op(t), jobs_qk(0), addr_k(), addr_wq(), dm, ex, hd, fx)
        g.stamp(1)
        A(f"s_add_u32 s{sKVoff}, s{sKVoff}, 131072")
        A(f"s_add_u32 s{sWoOff}, s{sWoOff}, 131072")
        A(f"s_add_u32 s{sWqOff}, s{sWqOff}, 256")
        A(f"s_add_u32 s{sH}, s{sH}, 1")
        A(f"s_cmp_ge_u32 s{sH}, 7"); A(f"s_cselect_b32 s{sWqOff}, 0x80000000, s{sWqOff}")
        A(f"s_cmp_lt_u32 s{sH}, 8"); A("s_cbranch_scc1 L_head")

    def tail():
        g.stamp(0)
        A("s_waitcnt vmcnt(0) lgkmcnt(0)")
        A("s_barrier")
        for k, s in h_partial_write(): put(k, s)
        for t in range(8):
            for d in dma_wo(t, ("E", t), t * 16384): emit_dma(d)
        for e in x_factors(): put(e[1], e[2])
        A("s_waitcnt lgkmcnt(0)")
        A("s_barrier")
        for k, s in h_partial_read(): put(k, s)
        A("s_waitcnt lgkmcnt(0)")
        for e in x_merge(0) + x_merge(1): put(e[1], e[2])
        A("s_waitcnt vmcnt(0) lgkmcnt(0)")
        A("s_barrier")
        g.stamp(0)
        for f in range(8):
            g.ds(f"ds_read_b128 v[{QF+4*f}:{QF+4*f+3}], v{vXq} offset:{(f>>2)*16384 + (f&3)*1024}")
        def set_addr(t):
            r = ADW if t % 2 == 0 else ADK
            A(f"v_add_u32 v{r}, {t*16384}, v{vWOB}")
            for i in range(1, 4): A(f"v_xor_b32 v{r+i}, {i<<6}, v{r}")
        def ejobs(t):
            r = ADW if t % 2 == 0 else ADK
            js = []
            for i in range(8):
                def rd(dst, i=i, r=r):
                    return [('d', f"ds_read_b64_tr_b16 v[{dst+2*h}:{dst+2*h+1}], v{r+(i&3)} offset:{h*4096 + (i>>2)*256}") for h in range(2)]
                def mf(a, i=i, t=t):
                    d = AOUT + 16 * i
                    return f"v_mfma_f32_32x32x16_bf16 a[{d}:{d+15}], v[{a}:{a+3}], v[{QF+4*t}:{QF+4*t+3}], a[{d}:{d+15}]"
                js.append((rd, mf))
            return js
        alljobs = [j for t in range(8) for j in ejobs(t)]
        set_addr(0); set_addr(1)
        LA = 7
        for j in range(LA): issue_reads(alljobs[j], j % NB)
        for j in range(64):
            b = j % NB
            w = g.cnt - pos[b]
            if w < 500: A(f"s_waitcnt lgkmcnt({min(w, 15)})")
            A(alljobs[j][1](FB + 4 * b))
            n = j + LA
            if n < 64:
                if n % 8 == 0 and n // 8 + 1 < 8: pass
                issue_reads(alljobs[n], n % NB)
                if n % 8 == 7 and n // 8 + 2 < 8: set_addr(n // 8 + 2)
        g.stamp(0)
        A(f"s_lshl_b32 s{sT0}, s{sBR}, 5"); A(f"s_add_u32 s{sT0}, s{sT0}, s{sB}"); A(f"s_lshl_b32 s{sT0}, s{sT0}, 2"); A(f"s_add_u32 s{sT0}, s{sT0}, s{sHG}")
        A(f"s_lshl_b32 s{sT0}, s{sT0}, 17"); A(f"s_lshl_b32 s{sT1}, s{sWave}, 15"); A(f"s_add_u32 s{sT0}, s{sT0}, s{sT1}")
        A(f"s_mov_b32 s{sXS}, s58"); A(f"s_mov_b32 s{sXS+1}, s59"); A(f"s_mov_b32 s{sXS+2}, 0x2000000"); A(f"s_mov_b32 s{sXS+3}, 0x20000")
        A("s_nop 3")
        for i in range(8):
            A(f"s_add_u32 s{sT1}, s{sT0}, {i*4096}")
            for a in range(4):
                r = AOUT + 16 * i + 4 * a
                A(f"buffer_store_dwordx4 a[{r}:{r+3}], v{vDWO}, s[{sXS}:{sXS+3}], s{sT1} offen offset:{a*1024}{cfg.stflags}")
        A("s_waitcnt vmcnt(0)")
        if cfg.prof:
            g.stamp(0)
            A(f"s_mov_b32 s{sXS+2}, 0x4000000")
            A(f"s_lshl_b32 s{sT0}, s2, 2"); A(f"s_add_u32 s{sT0}, s{sT0}, s{sWave}"); A(f"s_lshl_b32 s{sT0}, s{sT0}, 9"); A(f"s_add_u32 s{sT0}, s{sT0}, 0x2000000")
            A("v_mov_b32 v1, 0")
            for k in range(26): A(f"v_writelane_b32 v1, s{sST+k}, {k}")
            A(f"v_lshrrev_b32 v0, 2, v{vDWO}")
            A(f"buffer_store_dword v1, v0, s[{sXS}:{sXS+3}], s{sT0} offen")
            A("s_waitcnt vmcnt(0)")
        A("L_end:")
        A("s_endpgm")

    def reduce_kernel():
        A(f".globl {RN}"); A(".p2align 8"); A(f".type {RN},@function"); A(f"{RN}:")
        A("s_cmp_ge_u32 s2, 512"); A("s_cbranch_scc1 L_rend")
        A("s_load_dwordx2 s[4:5], s[0:1], 96")
        A("s_load_dwordx2 s[6:7], s[0:1], 80")
        A("s_lshr_b32 s16, s2, 3"); A("s_and_b32 s17, s2, 7")
        A("v_and_b32 v1, 63, v0"); A("v_lshrrev_b32 v2, 6, v0")
        A("v_lshlrev_b32 v3, 4, v1"); A("v_lshl_add_u32 v3, v2, 15, v3")
        A("s_lshl_b32 s18, s16, 19"); A("s_lshl_b32 s19, s17, 12"); A("s_add_u32 s18, s18, s19")
        A("s_waitcnt lgkmcnt(0)")
        A("s_mov_b32 s8, s4"); A("s_mov_b32 s9, s5"); A("s_mov_b32 s10, 0x2000000"); A("s_mov_b32 s11, 0x20000")
        A("s_mov_b32 s12, s6"); A("s_mov_b32 s13, s7"); A("s_mov_b32 s14, 0x400000"); A("s_mov_b32 s15, 0x20000")
        for hg in range(4):
            A(f"s_add_u32 s19, s18, {hg*131072}")
            for a in range(4):
                r = 8 + 16 * hg + 4 * a
                A(f"buffer_load_dwordx4 v[{r}:{r+3}], v3, s[8:11], s19 offen offset:{a*1024}")
        A("s_and_b32 s20, s16, 31"); A("s_lshr_b32 s21, s16, 5")
        A("s_lshl_b32 s20, s20, 17")
        A("s_lshl_b32 s21, s21, 10"); A("s_add_u32 s20, s20, s21")
        A("s_lshl_b32 s21, s17, 6"); A("s_add_u32 s20, s20, s21")
        A("v_and_b32 v4, 31, v1"); A("v_and_b32 v5, 1, v2"); A("v_lshl_add_u32 v4, v5, 5, v4"); A("v_lshlrev_b32 v4, 11, v4")
        A("v_lshrrev_b32 v5, 1, v2"); A("v_lshl_add_u32 v4, v5, 9, v4")
        A("v_lshrrev_b32 v5, 5, v1"); A("v_lshl_add_u32 v4, v5, 4, v4")
        A("s_waitcnt vmcnt(8)")
        for k in range(16): A(f"v_add_f32 v{8+k}, v{8+k}, v{24+k}")
        A("s_waitcnt vmcnt(0)")
        for k in range(16): A(f"v_add_f32 v{40+k}, v{40+k}, v{56+k}")
        for k in range(16): A(f"v_add_f32 v{8+k}, v{8+k}, v{40+k}")
        for j in range(8): A(f"v_cvt_pk_bf16_f32 v{24+j}, v{8+2*j}, v{9+2*j}")
        A("buffer_store_dwordx4 v[24:27], v4, s[12:15], s20 offen")
        A("buffer_store_dwordx4 v[28:31], v4, s[12:15], s20 offen offset:32")
        A("s_waitcnt vmcnt(0)")
        A("L_rend:")
        A("s_endpgm")
        A('.section .rodata,"a"')
        A(".p2align 6"); A(f".amdhsa_kernel {KN}")
        A("  .amdhsa_next_free_vgpr 512"); A("  .amdhsa_next_free_sgpr 102"); A("  .amdhsa_accum_offset 256")
        A("  .amdhsa_group_segment_fixed_size 0"); A("  .amdhsa_kernarg_size 104"); A("  .amdhsa_user_sgpr_count 2")
        A("  .amdhsa_user_sgpr_kernarg_segment_ptr 1"); A("  .amdhsa_system_sgpr_workgroup_id_x 1"); A(".end_amdhsa_kernel")
        A(".p2align 6"); A(f".amdhsa_kernel {RN}")
        A("  .amdhsa_next_free_vgpr 72"); A("  .amdhsa_next_free_sgpr 32"); A("  .amdhsa_accum_offset 72")
        A("  .amdhsa_group_segment_fixed_size 0"); A("  .amdhsa_kernarg_size 104"); A("  .amdhsa_user_sgpr_count 2")
        A("  .amdhsa_user_sgpr_kernarg_segment_ptr 1"); A("  .amdhsa_system_sgpr_workgroup_id_x 1"); A(".end_amdhsa_kernel")

    g.emit = False; g.q = []
    prologue(); stage_P()
    for h in range(8): head(h)
    back = dict(pos); backcnt = g.cnt
    tail()
    g.emit = True; g.q = []; g.cnt = 0; g.lab = 0
    prologue(); stage_P()
    for b in range(NB): pos[b] = g.cnt - (backcnt - back[b])
    head(0); tail(); reduce_kernel()
    if "-v" in sys.argv: print(g.req)
    return "\n".join(g.L) + "\n"

if __name__ == "__main__":
    out = sys.argv[1]
    for a in sys.argv[2:]:
        if "=" in a:
            k, v = a.split("=", 1)
            setattr(Cfg, k, eval(v))
    open(out, "w").write(gen())
```

```python
import sys, struct, math

KN = "concat_heads__mha_block_cached__mha_block_cached__near_ridge_kernel"
RN = "mha_reduce_kernel"

class Cfg:
    NKV = 5
    NW = 3
    warm = True
    wmode = 'bulkP'
    prof = False
    prof_head = 3
    dma_pos = [0, 2, 4, 6, 8, 10, 12, 14]
    stflags = ''
    wplan = [(-1, 0, 14), (7, 14, 18)]
    rdflags = ''
    pbf16 = True

def f32bits(x):
    return struct.unpack("<I", struct.pack("<f", x))[0]

NB = 8
QF = 128; QA = 160
ACC = [32, 48, 160, 176]
def Sreg(t): return 16 * t
def Preg(t): return 8 * t if t < 4 else 64 + 8 * (t - 4)
FB = 192; ADK = 224; ADW = 228
vKB, vVB, vWQB, vWOB = 232, 233, 234, 235
vDK, vDV, vDWO, vDWQ, vDt = 236, 237, 238, 239, 240
vXown, vXq, vDummy = 241, 242, 243
OFr = 244
vMx, vMc, vL, vAl, vS0, vS1, vS2, vS3 = 248, 249, 250, 251, 252, 253, 254, 255
AOUT = 0; AX = 128

sK, sV, sWQ, sWO, sXS = 8, 12, 16, 20, 24
sRole, sH, sKVoff, sWoOff, sWqOff = 28, 29, 30, 31, 32
sPkv, sPw, sKVc, sWc, sC, sT0, sT1, sWave, sHW = 33, 34, 60, 61, 62, 63, 64, 65, 66
sB, sHG, sBR, sW4 = 67, 68, 69, 71
sWarmQ, sWarmO = 74, 75
sST = 76

class Gen:
    def __init__(self, cfg):
        self.cfg = cfg; self.req = {}; self.L = []; self.emit = False; self.q = []; self.lab = 0; self.cnt = 0
        self.nst = 0
    def A(self, s):
        if self.emit: self.L.append(s)
    def newlab(self, p):
        self.lab += 1
        return f"L_{p}_{self.lab}"
    def ds(self, s):
        self.A(s); self.cnt += 1
    def vm(self, s, tag):
        self.A(s); self.q.append(tag)
    def vwait(self, site, tags):
        idx = max([i for i, t in enumerate(self.q) if t in tags], default=-1)
        c = len(self.q) - 1 - idx
        if not self.emit: self.req[site] = min(self.req.get(site, 63), c)
        else: self.A(f"s_waitcnt vmcnt({min(self.req[site], 63)})")
    def stamp(self, inloop):
        if not self.cfg.prof or not self.emit: return
        if bool(inloop) != (self.cfg.prof == 'loop'): return
        A = self.A
        k = self.nst; self.nst += 1
        assert k < 26
        if inloop:
            l = self.newlab("st")
            A(f"s_cmp_lg_u32 s{sH}, {self.cfg.prof_head}"); A(f"s_cbranch_scc1 {l}")
        A("s_memtime s[72:73]"); A("s_waitcnt lgkmcnt(0)")
        A(f"s_mov_b32 s{sST+k}, s72")
        if inloop: A(f"{l}:")

def gen(cfg=Cfg):
    g = Gen(cfg)
    NKV, NW = cfg.NKV, cfg.NW
    DKV, DW = NKV - 1, NW - 1
    assert DKV >= DW + 2 and NW == 3 and NKV == 5
    KVBASE = 0; WBASE = NKV * 16384; XBASE = WBASE + NW * 16384; LDS = XBASE + 32768
    assert LDS <= 163840 and XBASE % 32768 == 0
    XST = KVBASE + 16384
    PSLOT = [WBASE, WBASE + 16384, WBASE + 32768, XBASE, XBASE + 16384, WBASE, WBASE + 16384, WBASE + 32768]
    A = g.A

    def adv(reg, base, n):
        return [f"s_add_u32 s{reg}, s{reg}, 16384", f"s_cmp_ge_u32 s{reg}, {base + n*16384}", f"s_cselect_b32 s{reg}, {base}, s{reg}"]
    def advp(reg, base, n):
        return [f"s_add_u32 s{reg}, s{reg}, 16384", f"s_cmp_ge_u32 s{reg}, {base + n*16384}", f"s_cselect_b32 s{sT1}, {n*16384}, 0", f"s_sub_u32 s{reg}, s{reg}, s{sT1}"]
    def vo_x(base, i):
        if i == 0: return ["s_nop 0"], base
        return [f"v_xor_b32 v{vDt}, {i<<6}, v{base}"], vDt
    def dma_kv(m, tag):
        tt, carry = m & 15, m >> 4
        srd = sK if tt < 8 else sV
        off = (tt & 7) * 16384 + carry * 131072
        gs = []
        for i in range(4):
            if tt < 8: p2, vo = vo_x(vDK, i)
            else: p2, vo = ["s_nop 0"], vDV
            pre = [f"s_add_u32 s{sT0}, s{sKVoff}, {off}", f"s_mov_b32 m0, s{sPkv}"] + p2
            ld = f"buffer_load_dwordx4 v{vo}, s[{srd}:{srd+3}], s{sT0} offen offset:{i*1024} nt lds"
            gs.append((pre, ld, advp(sPkv, KVBASE, NKV) if i == 3 else [], tag))
        return gs
    def dma_wo(tile, tag, slot=None):
        gs = []
        for i in range(4):
            p2, vo = vo_x(vDWO, i)
            m0 = f"s_mov_b32 m0, s{sPw}" if slot is None else f"s_add_u32 m0, s{sW4}, {slot}"
            pre = [f"s_add_u32 s{sT0}, s{sWoOff}, {tile*16384}", m0] + p2
            ld = f"buffer_load_dwordx4 v{vo}, s[{sWO}:{sWO+3}], s{sT0} offen offset:{i*1024} lds"
            gs.append((pre, ld, advp(sPw, WBASE, NW) if (i == 3 and slot is None) else [], tag))
        return gs
    def dma_wq(tile, dh, tag, slot=None):
        gs = []
        for i in range(4):
            m0 = f"s_add_u32 m0, s{sPw}, {i*1024}" if slot is None else f"s_add_u32 m0, s{sW4}, {slot + i*1024}"
            pre = [f"s_add_u32 s{sT0}, s{sWqOff}, {tile*524288 + i*32768 + dh*256}", m0, "s_nop 0"]
            ld = f"buffer_load_dwordx4 v{vDWQ}, s[{sWQ}:{sWQ+3}], s{sT0} offen lds"
            gs.append((pre, ld, advp(sPw, WBASE, NW) if (i == 3 and slot is None) else [], tag))
        return gs
    def warm_wq(dh):
        return ([f"s_add_u32 s{sT0}, s{sWqOff}, s{sWarmQ}"] + ([f"s_add_u32 s{sT0}, s{sT0}, {dh*256}"] if dh else []),
                f"buffer_load_dword v{vDummy}, v{vDWQ}, s[{sWQ}:{sWQ+3}], s{sT0} offen", [], "warm")
    def warm_wo(dh):
        return ([f"s_add_u32 s{sT0}, s{sWoOff}, s{sWarmO}", f"s_add_u32 s{sT0}, s{sT0}, {dh*131072}"],
                f"buffer_load_dword v{vDummy}, v{vDWO}, s[{sWO}:{sWO+3}], s{sT0} offen", [], "warm")
    def emit_dma(gr):
        pre, ld, post, tag = gr
        for s in pre: A(s)
        g.vm(ld, tag)
        for s in post: A(s)
    def dma_w_loop(h, tg):
        m = tg + DW
        tag = ("W", 8 + 16 * h + m)
        if m < 8: return dma_wq(m, 0, tag)
        if m < 16: return dma_wo(m - 8, tag)
        return dma_wq(m - 16, 1, tag)
    def dma_kv_loop(h, tg):
        return dma_kv(tg + DKV, ("KV", 16 * h + tg + DKV))

    def jobs_qk(t):
        js = []
        for s in range(8):
            def rd(dst, s=s):
                if s == 0: return [('d', f"ds_read_b128 v[{dst}:{dst+3}], v{ADK}")]
                tmp = ADK + 1 + (s & 1)
                return [('v', f"v_xor_b32 v{tmp}, {s<<5}, v{ADK}"), ('d', f"ds_read_b128 v[{dst}:{dst+3}], v{tmp}")]
            def mf(a, s=s, t=t):
                d = Sreg(t)
                c = "0" if s == 0 else f"v[{d}:{d+15}]"
                return f"v_mfma_f32_32x32x16_bf16 v[{d}:{d+15}], v[{a}:{a+3}], v[{QF+4*s}:{QF+4*s+3}], {c}"
            js.append((rd, mf))
        return js
    def jobs_op(t, breg=OFr):
        js = []
        for i in range(8):
            def rd(dst, i=i):
                return [('d', f"ds_read_b64_tr_b16 v[{dst+2*h}:{dst+2*h+1}], v{ADW+(i&3)} offset:{h*4096 + (i>>2)*256}") for h in range(2)]
            def mf(a, i=i):
                d = AOUT + 16 * i
                return f"v_mfma_f32_32x32x16_bf16 a[{d}:{d+15}], v[{a}:{a+3}], v[{breg}:{breg+3}], a[{d}:{d+15}]"
            js.append((rd, mf))
        return js
    def jobs_pv(t):
        js = []
        for (u, i) in [(0, 0), (0, 1), (1, 0), (1, 1), (0, 2), (0, 3), (1, 2), (1, 3)]:
            def rd(dst, i=i, u=u):
                return [('d', f"ds_read_b64_tr_b16 v[{dst+2*h}:{dst+2*h+1}], v{ADK+i} offset:{u*4096 + h*2048}") for h in range(2)]
            def mf(a, i=i, u=u, t=t):
                d = ACC[i]
                c = "0" if (t == 0 and u == 0) else f"v[{d}:{d+15}]"
                p = Preg(t) + 4 * u
                return f"v_mfma_f32_32x32x16_bf16 v[{d}:{d+15}], v[{a}:{a+3}], v[{p}:{p+3}], {c}"
            js.append((rd, mf))
        return js
    def jobs_qp(t):
        js = []
        for s in range(4):
            for i in range(2):
                def rd(dst, i=i, s=s):
                    return [('d', f"ds_read_b64_tr_b16 v[{dst+2*h}:{dst+2*h+1}], v{ADW+i} offset:{s*4096 + h*1024}") for h in range(2)]
                def mf(a, i=i, s=s, t=t):
                    d = QA + 16 * i
                    c = "0" if (t == 0 and s == 0) else f"v[{d}:{d+15}]"
                    x = AX + 4 * (4 * t + s)
                    return f"v_mfma_f32_32x32x16_bf16 v[{d}:{d+15}], v[{a}:{a+3}], a[{x}:{x+3}], {c}"
                js.append((rd, mf))
        return js
    def addr_k(): return adv(sKVc, KVBASE, NKV) + [f"v_add_u32 v{ADK}, s{sKVc}, v{vKB}"]
    def addr_v(): return adv(sKVc, KVBASE, NKV) + [f"v_add_u32 v{ADK}, s{sKVc}, v{vVB}"] + [f"v_xor_b32 v{ADK+i}, {i<<6}, v{ADK}" for i in range(1, 4)]
    def addr_wo(): return adv(sWc, WBASE, NW) + [f"v_add_u32 v{ADW}, s{sWc}, v{vWOB}"] + [f"v_xor_b32 v{ADW+i}, {i<<6}, v{ADW}" for i in range(1, 4)]
    def addr_wq(): return adv(sWc, WBASE, NW) + [f"v_add_u32 v{ADW}, s{sWc}, v{vWQB}", f"v_xor_b32 v{ADW+1}, 64, v{ADW}"]

    pos = {}
    def put(kind, text):
        if kind == 'd': g.ds(text)
        else: A(text)
    def issue_reads(job, b):
        for k, s in job[0](FB + 4 * b): put(k, s)
        pos[b] = g.cnt
    def cost(it):
        return 2 if it[2].startswith(("v_exp", "v_rcp")) else 1

    def full_step(kvjobs, wjobs, nxt_kvjobs, nxt_kv_addr, nxt_w_addr, dmas, extras=(), head=(), fixed=None, drained=False):
        jobs = kvjobs + wjobs
        if drained:
            for b in range(NB): pos[b] = -1000
        for k, s in head: put(k, s)
        dq = list(dmas); ex = list(extras); fixed = fixed or {}
        for j in range(16):
            b = j % NB
            w = g.cnt - pos[b]
            if w < 500: A(f"s_waitcnt lgkmcnt({min(w, 15)})")
            A(jobs[j][1](FB + 4 * b))
            if j < 8: issue_reads(jobs[j + 8], b)
            if j == 7:
                for s in nxt_kv_addr: A(s)
                for s in nxt_w_addr: A(s)
            if j >= 8 and nxt_kvjobs: issue_reads(nxt_kvjobs[j - 8], b)
            for k, s in fixed.get(j, []): put(k, s)
            if j in cfg.dma_pos and dq: emit_dma(dq.pop(0))
            rem = sum(cost(e) for e in ex)
            quota = math.ceil(rem / (16 - j))
            used = 0
            while ex and ex[0][0] <= j and used < quota:
                e = ex.pop(0); put(e[1], e[2]); used += cost(e)
        for d in dq: emit_dma(d)
        for e in ex: put(e[1], e[2])

    def half_step(wjobs, dmas):
        for j in range(8): issue_reads(wjobs[j], j)
        dq = list(dmas)
        for j in range(8):
            w = g.cnt - pos[j]
            if w < 500: A(f"s_waitcnt lgkmcnt({min(w, 15)})")
            A(wjobs[j][1](FB + 4 * j))
            if dq and (j % 2 == 0 or len(dq) > 8 - j): emit_dma(dq.pop(0))
            if len(dq) > 2 * (8 - j): emit_dma(dq.pop(0))
        for d in dq: emit_dma(d)

    def x_max(t, first=False, e=0):
        b = Sreg(t); out = []
        if first:
            out.append((e, 'v', f"v_max_f32 v{vMx}, v{b}, v{b+1}")); k0 = 2
        else: k0 = 0
        for k in range(k0, 16, 2): out.append((e, 'v', f"v_max3_f32 v{vMx}, v{vMx}, v{b+k}, v{b+k+1}"))
        return out
    def x_crossmax(e=0):
        return [(e, 'v', f"v_mov_b32 v{vAl}, v{vMx}"), (e, 'v', "s_nop 1"), (e, 'v', f"v_permlane32_swap_b32 v{vMx}, v{vAl}"),
                (e, 'v', f"v_max_f32 v{vMx}, v{vMx}, v{vAl}")]
    def x_exp(t, e=0):
        b = Sreg(t); p = Preg(t); out = []
        for j in range(9):
            if j < 8:
                out += [(e, 'v', f"v_fma_f32 v{b+2*j}, v{b+2*j}, s{sC}, -v{vMc}"), (e, 'v', f"v_fma_f32 v{b+2*j+1}, v{b+2*j+1}, s{sC}, -v{vMc}"),
                        (e, 'v', f"v_exp_f32 v{b+2*j}, v{b+2*j}"), (e, 'v', f"v_exp_f32 v{b+2*j+1}, v{b+2*j+1}")]
            else:
                out += [(e, 'v', "s_nop 0")]
            if j > 0:
                k = j - 1
                out += [(e, 'v', f"v_add_f32 v{vL}, v{vL}, v{b+2*k}"), (e, 'v', f"v_add_f32 v{vL}, v{vL}, v{b+2*k+1}"),
                        (e, 'v', f"v_cvt_pk_bf16_f32 v{p+k}, v{b+2*k}, v{b+2*k+1}")]
        return out
    def x_factors(e=0):
        return [(e, 'v', s) for s in [
            f"v_max_f32 v{vAl}, v{vS0}, v{vS2}", f"v_sub_f32 v{vS0}, v{vS0}, v{vAl}", f"v_sub_f32 v{vS2}, v{vS2}, v{vAl}",
            f"v_exp_f32 v{vS0}, v{vS0}", f"v_exp_f32 v{vS2}, v{vS2}", "s_nop 0",
            f"v_mul_f32 v{vS1}, v{vS1}, v{vS0}", f"v_fma_f32 v{vS1}, v{vS3}, v{vS2}, v{vS1}", f"v_rcp_f32 v{vS1}, v{vS1}", "s_nop 0",
            f"v_mul_f32 v{vS0}, v{vS0}, v{vS1}", f"v_mul_f32 v{vS1}, v{vS2}, v{vS1}"]]
    def x_merge(i, e=0):
        a = ACC[i]; r = 64 + 16 * i; p = 96 + 8 * i; out = []
        for j in range(8):
            for k in (2 * j, 2 * j + 1):
                out += [(e, 'v', f"v_mul_f32 v{a+k}, v{a+k}, v{vS0}"), (e, 'v', f"v_fma_f32 v{a+k}, v{r+k}, v{vS1}, v{a+k}")]
            out.append((e, 'v', f"v_cvt_pk_bf16_f32 v{p+j}, v{a+2*j}, v{a+2*j+1}"))
            if j in (3, 7):
                f = 2 * i + (j >> 2)
                out.append((e, 'd', f"ds_write_b128 v{vXown}, v[{96+4*f}:{99+4*f}] offset:{f*1024}"))
        return out
    def h_partial_write():
        out = [('v', f"v_xor_b32 v{vDt}, 0x4000, v{vXown}")]
        for k in range(8):
            r = ACC[2 + (k >> 2)] + 4 * (k & 3)
            out.append(('d', f"ds_write_b128 v{vDt}, v[{r}:{r+3}] offset:{k*1024}"))
        return out
    def h_partial_read():
        return [('d', f"ds_read_b128 v[{64+4*k}:{67+4*k}], v{vXown} offset:{k*1024}") for k in range(8)]
    def qpack(f):
        return [('v', f"v_cvt_pk_bf16_f32 v{QF+4*f+j}, v{QA+8*f+2*j}, v{QA+8*f+2*j+1}") for j in range(4)]
    def qwrite():
        return [('d', f"ds_write_b128 v{vXown}, v[{QF+4*f}:{QF+4*f+3}] offset:{4096 + f*1024}") for f in range(4)]
    def qread():
        return [('d', f"ds_read_b128 v[{QF+4*f}:{QF+4*f+3}], v{vXq} offset:{(f>>2)*16384 + (f&3)*1024 + 4096}") for f in range(8)]

    def prologue():
        A(f"; @launch kernel={KN} grid=(256,1,1) block=(256,1,1) lds={LDS}")
        A(f"; @launch kernel={RN} grid=(512,1,1) block=(256,1,1) lds=0")
        A('.amdgcn_target "amdgcn-amd-amdhsa--gfx950"')
        A(".text")
        A(f".globl {KN}"); A(".p2align 8"); A(f".type {KN},@function"); A(f"{KN}:")
        A("s_cmp_ge_u32 s2, 256"); A("s_cbranch_scc1 L_end")
        A("s_load_dwordx8 s[36:43], s[0:1], 0")
        A("s_load_dwordx2 s[44:45], s[0:1], 32")
        A("s_load_dwordx8 s[48:55], s[0:1], 40")
        A("s_load_dwordx2 s[56:57], s[0:1], 72")
        A("s_load_dwordx2 s[58:59], s[0:1], 96")
        A(f"s_lshr_b32 s{sBR}, s2, 2"); A(f"s_and_b32 s{sBR}, s{sBR}, 1")
        A(f"s_and_b32 s{sHG}, s2, 3")
        A(f"s_lshr_b32 s{sB}, s2, 3")
        A("v_lshrrev_b32 v1, 6, v0")
        A("v_and_b32 v2, 63, v0")
        A(f"v_readfirstlane_b32 s{sWave}, v1")
        A("v_lshrrev_b32 v10, 4, v2"); A("v_and_b32 v11, 15, v2")
        A("v_lshlrev_b32 v12, 2, v10"); A("v_xor_b32 v12, v12, v11"); A("v_lshlrev_b32 v12, 4, v12")
        A(f"v_lshl_add_u32 v{vDV}, v10, 8, v12")
        A(f"v_lshl_add_u32 v{vDWQ}, v10, 13, v12")
        A("v_xor_b32 v13, v10, v11"); A("v_lshlrev_b32 v13, 4, v13"); A(f"v_lshl_add_u32 v{vDK}, v10, 8, v13")
        A(f"v_lshlrev_b32 v{vDWO}, 4, v2")
        A("s_waitcnt lgkmcnt(0)")
        A(f"s_cmp_eq_u32 s{sBR}, 0")
        for i in range(10):
            A(f"s_cselect_b32 s{36+i}, s{36+i}, s{48+i}")
        A(f"s_lshl_b32 s{sT0}, s{sB}, 22"); A(f"s_lshl_b32 s{sT1}, s{sHG}, 20"); A(f"s_add_u32 s{sT0}, s{sT0}, s{sT1}")
        A(f"s_add_u32 s{sK}, s38, s{sT0}"); A(f"s_addc_u32 s{sK+1}, s39, 0"); A(f"s_mov_b32 s{sK+2}, 0x100000"); A(f"s_mov_b32 s{sK+3}, 0x20000")
        A(f"s_add_u32 s{sV}, s40, s{sT0}"); A(f"s_addc_u32 s{sV+1}, s41, 0"); A(f"s_mov_b32 s{sV+2}, 0x100000"); A(f"s_mov_b32 s{sV+3}, 0x20000")
        A(f"s_lshl_b32 s{sT0}, s{sHG}, 11")
        A(f"s_add_u32 s{sWQ}, s42, s{sT0}"); A(f"s_addc_u32 s{sWQ+1}, s43, 0"); A(f"s_sub_u32 s{sWQ+2}, 0x400000, s{sT0}"); A(f"s_mov_b32 s{sWQ+3}, 0x20000")
        A(f"s_add_u32 s{sWO}, s44, s{sT1}"); A(f"s_addc_u32 s{sWO+1}, s45, 0"); A(f"s_mov_b32 s{sWO+2}, 0x100000"); A(f"s_mov_b32 s{sWO+3}, 0x20000")
        A(f"s_lshl_b32 s{sT0}, s{sB}, 16")
        A(f"s_add_u32 s{sXS}, s36, s{sT0}"); A(f"s_addc_u32 s{sXS+1}, s37, 0"); A(f"s_mov_b32 s{sXS+2}, 0x10000"); A(f"s_mov_b32 s{sXS+3}, 0x20000")
        A(f"s_lshr_b32 s{sRole}, s{sWave}, 1")
        A(f"s_and_b32 s{sHW}, s{sWave}, 1")
        A(f"s_lshl_b32 s{sW4}, s{sWave}, 12")
        A(f"s_mov_b32 s{sC}, 0x{f32bits(128 ** -0.5 * 1.4426950408889634):08x}")
        A(f"s_add_u32 s{sPkv}, s{sW4}, {KVBASE}"); A(f"s_add_u32 s{sPw}, s{sW4}, {WBASE}")
        A(f"s_mov_b32 s{sKVoff}, s{sW4}")
        A(f"s_sub_u32 s{sWoOff}, s{sW4}, 131072")
        A(f"s_lshl_b32 s{sWqOff}, s{sWave}, 17")
        A(f"s_mov_b32 s{sKVc}, {KVBASE + (NKV-1)*16384}"); A(f"s_mov_b32 s{sWc}, {WBASE + (NW-1)*16384}")
        A(f"s_mov_b32 s{sH}, 0")
        A(f"s_lshl_b32 s{sWarmQ}, s{sB}, 17"); A(f"s_lshl_b32 s{sT0}, s{sWave}, 15"); A(f"s_add_u32 s{sWarmQ}, s{sWarmQ}, s{sT0}")
        A(f"s_sub_u32 s{sWarmQ}, s{sWarmQ}, s{sWqOff}")
        A(f"s_lshl_b32 s{sWarmO}, s{sB}, 12"); A(f"s_lshl_b32 s{sT0}, s{sWave}, 10"); A(f"s_add_u32 s{sWarmO}, s{sWarmO}, s{sT0}")
        A(f"s_sub_u32 s{sWarmO}, s{sWarmO}, s{sW4}")
        g.stamp(0)
        if cfg.warm:
            emit_dma(warm_wq(0))
        A("v_lshrrev_b32 v13, 3, v2"); A("v_and_b32 v14, 7, v2"); A("v_lshrrev_b32 v15, 1, v13"); A("v_xor_b32 v14, v14, v15")
        A("v_lshlrev_b32 v14, 4, v14"); A("v_lshl_add_u32 v14, v13, 10, v14"); A("v_xor_b32 v15, 64, v14")
        A(f"s_lshl_b32 s4, s{sWave}, 14"); A(f"s_lshl_b32 s5, s{sWave}, 11")
        def xblk(t):
            for j in range(2):
                A(f"s_add_u32 s{sT0}, s4, {j*8192 + t*128}"); A(f"s_add_u32 m0, s5, {XST + t*8192 + j*1024}"); A("s_nop 0")
                g.vm(f"buffer_load_dwordx4 v{14+j}, s[{sXS}:{sXS+3}], s{sT0} offen lds", ("x", t))
        for m in range(8):
            xblk(m)
            if m < 5:
                for d in dma_wq(m, 0, ("W", m), PSLOT[m]): emit_dma(d)
            if m == 1 and cfg.warm: emit_dma(warm_wq(1))
        g.stamp(0)
        for d in dma_kv(0, ("KV", 0)): emit_dma(d)
        A("s_mov_b32 s6, 0x80000000")
        if cfg.warm:
            for tt, lo, hi in cfg.wplan:
                if tt == -1:
                    for d in warm_list()[lo:hi]: emit_dma(d)
        A("v_lshrrev_b32 v3, 5, v2"); A("v_and_b32 v4, 31, v2")
        A("v_bfe_u32 v5, v2, 4, 1"); A("v_bfe_u32 v6, v2, 2, 2"); A("v_and_b32 v7, 3, v2")
        A("v_and_b32 v8, 1, v7"); A("v_lshlrev_b32 v8, 1, v8"); A("v_lshrrev_b32 v9, 1, v7"); A("v_or_b32 v8, v8, v9")
        A("v_lshlrev_b32 v8, 3, v8"); A("v_lshl_add_u32 v8, v5, 5, v8")
        A(f"v_mov_b32 v9, s{sRole}")
        A("v_lshlrev_b32 v10, 5, v9"); A("v_lshl_add_u32 v10, v3, 2, v10"); A("v_add_u32 v10, v10, v6")
        A("v_lshlrev_b32 v11, 1, v9"); A("v_xor_b32 v11, v11, v6")
        A("v_lshlrev_b32 v10, 8, v10"); A("v_lshl_add_u32 v10, v11, 6, v10"); A(f"v_add_u32 v{vVB}, v10, v8")
        A("v_lshl_add_u32 v12, v3, 3, v6")
        A("v_lshlrev_b32 v10, 8, v12"); A("v_lshl_add_u32 v10, v11, 6, v10"); A(f"v_add_u32 v{vWQB}, v10, v8")
        A("v_lshlrev_b32 v10, 10, v12"); A("v_lshl_add_u32 v10, v9, 9, v10"); A("v_lshl_add_u32 v10, v6, 6, v10"); A(f"v_add_u32 v{vWOB}, v10, v8")
        A("v_lshl_add_u32 v10, v9, 5, v4"); A("v_and_b32 v11, 15, v4"); A("v_xor_b32 v11, v11, v3")
        A("v_lshlrev_b32 v10, 8, v10"); A(f"v_lshl_add_u32 v{vKB}, v11, 4, v10")
        A(f"s_lshl_b32 s{sT0}, s{sWave}, 13"); A(f"s_add_u32 s{sT0}, s{sT0}, {XBASE}")
        A(f"v_add_u32 v{vXown}, s{sT0}, v{vDWO}")
        A(f"s_lshl_b32 s{sT1}, s{sHW}, 13"); A(f"s_add_u32 s{sT1}, s{sT1}, {XBASE}")
        A(f"v_add_u32 v{vXq}, s{sT1}, v{vDWO}")
        A(f"s_lshl_b32 s{sT0}, s{sHW}, 12"); A(f"s_add_u32 s{sT0}, s{sT0}, {XST}")
        A("v_bfe_u32 v11, v4, 1, 3"); A("v_xor_b32 v11, v11, v3"); A("v_lshlrev_b32 v11, 4, v11")
        A("v_lshl_add_u32 v11, v4, 7, v11"); A(f"v_add_u32 v16, s{sT0}, v11")
        for s in range(1, 4): A(f"v_xor_b32 v{16+s}, {s<<5}, v16")
        for i in range(128): A(f"v_accvgpr_write_b32 a{AOUT+i}, 0")
        for i in range(32): A(f"v_mov_b32 v{32+i}, 0")
        A(f"v_mov_b32 v{vS0}, 0"); A(f"v_mov_b32 v{vS1}, 1.0"); A(f"v_mov_b32 v{vS2}, 0"); A(f"v_mov_b32 v{vS3}, 1.0")
        g.stamp(0)

    def warm_list():
        pad = ([], f"buffer_load_dword v{vDummy}, v{vDWO}, s[{sWO}:{sWO+3}], s6 offen", [], "pad")
        return [warm_wo(1), warm_wq(2), warm_wo(2), warm_wq(3), warm_wo(3), warm_wq(4), warm_wo(4), warm_wq(5), warm_wo(5), warm_wq(6),
              warm_wo(6), warm_wq(7), warm_wo(7), warm_wo(8), pad, pad, pad, pad]
    def stage_P():
        wl = warm_list()
        wl_old = [warm_wo(1), warm_wq(2), warm_wo(2), warm_wq(3), warm_wo(3), warm_wq(4), warm_wo(4), warm_wq(5), warm_wo(5), warm_wq(6),
              warm_wo(6), warm_wq(7), warm_wo(7), warm_wo(8)]
        for t in range(8):
            A(f"v_add_u32 v{ADW}, {PSLOT[t]}, v{vWQB}"); A(f"v_xor_b32 v{ADW+1}, 64, v{ADW}")
            g.vwait(("P", t), {("W", t), ("x", t)})
            A("s_barrier")
            g.stamp(0)
            for s in range(4):
                g.ds(f"ds_read_b128 a[{AX+16*t+4*s}:{AX+16*t+4*s+3}], v{16+s} offset:{t*8192}")
            dm = []
            if 1 <= t <= 3: dm = dma_wq(t + 4, 0, ("W", t + 4), PSLOT[t + 4])
            if t >= 6: dm = dma_wq(t - 6, 1, ("W", t + 2))
            if t in (2, 4, 6): dm += dma_kv(t // 2, ("KV", t // 2))
            if cfg.warm:
                for tt, lo, hi in cfg.wplan:
                    if t == tt: dm += wl[lo:hi]
            half_step(jobs_qp(t), dm)
        A(f"s_add_u32 s{sWqOff}, s{sWqOff}, 256")
        for s in addr_k(): A(s)
        for s in addr_wq(): A(s)
        A("s_nop 7")
        for f in range(4):
            for k, s in qpack(f): put(k, s)
        for k, s in qwrite(): put(k, s)
        for i in range(32): A(f"v_mov_b32 v{QA+i}, 0")
        A("s_waitcnt lgkmcnt(0)")
        g.vwait(("PP",), {("KV", 0)})
        A("s_barrier")
        for k, s in qread(): put(k, s)
        js = jobs_qk(0)
        for j in range(8): issue_reads(js[j], j)
        A("s_waitcnt lgkmcnt(0)")
        g.stamp(0)
        A("L_head:")

    def head(h):
        for t in range(8):
            g.vwait(("A", t), {("W", 8 + 16 * h + t), ("KV", 16 * h + t + 1)})
            A("s_barrier")
            g.stamp(1)
            dm = dma_w_loop(h, t) + dma_kv_loop(h, t)
            hd = []; ex = []
            if t == 0: hd = h_partial_write(); ex = x_factors()
            if t == 1: hd = h_partial_read(); ex = x_max(0, first=True) + x_merge(0, e=8)
            if t == 2: ex = x_merge(1) + x_max(1)
            if t == 3: ex = x_max(2)
            if t == 4:
                ex = x_max(3) + x_crossmax() + [(0, 'v', f"v_mul_f32 v{vMc}, s{sC}, v{vMx}"), (0, 'v', f"v_mov_b32 v{vL}, 0")] + x_exp(0)
            if t >= 5: ex = x_exp(t - 4) + x_max(t - 1)
            if t < 7: full_step(jobs_qk(t), jobs_qp(t), jobs_qk(t + 1), addr_k(), addr_wq(), dm, ex, hd)
            else: full_step(jobs_qk(t), jobs_qp(t), jobs_pv(0), addr_v(), addr_wo(), dm, ex, hd)
        for t in range(8):
            g.vwait(("B", t), {("W", 16 + 16 * h + t), ("KV", 16 * h + 8 + t + 1)})
            A("s_barrier")
            g.stamp(1)
            dm = dma_w_loop(h, 8 + t) + dma_kv_loop(h, 8 + t)
            hd = [('d', f"ds_read_b128 v[{OFr}:{OFr+3}], v{vXq} offset:{(t>>2)*16384 + (t&3)*1024}")]
            ex = []; fx = None
            if t == 0:
                fx = {0: qpack(0), 1: qpack(1), 2: qpack(2), 3: qpack(3), 4: qwrite()}
                ex = x_max(7, e=5) + x_crossmax(5) + [(5, 'v', s) for s in [
                    f"v_mul_f32 v{vS2}, s{sC}, v{vMx}", f"v_sub_f32 v{vAl}, v{vMc}, v{vS2}", f"v_exp_f32 v{vAl}, v{vAl}",
                    f"v_mov_b32 v{vMc}, v{vS2}", f"v_mul_f32 v{vL}, v{vL}, v{vAl}"]]
            if t == 1: hd += qread(); ex = x_exp(4)
            if t == 2: ex = x_exp(5)
            if t == 3:
                for i, e in [(0, 5), (1, 6), (2, 9), (3, 10)]:
                    ex += [(e, 'v', f"v_mul_f32 v{ACC[i]+k}, v{ACC[i]+k}, v{vAl}") for k in range(16)]
            if t == 4: ex = x_exp(6)
            if t == 5: ex = x_exp(7)
            if t == 6:
                fx = {0: [('v', f"v_mov_b32 v{vAl}, v{vL}"), ('v', f"v_mov_b32 v{vS0}, v{vMc}"), ('v', "s_nop 0"),
                          ('v', f"v_permlane32_swap_b32 v{vL}, v{vAl}")],
                      1: [('v', f"v_add_f32 v{vS1}, v{vL}, v{vAl}"), ('d', f"ds_write_b64 v{vXown}, v[{vS0}:{vS1}] offset:4096")]}
            if t == 7:
                hd += [('v', f"v_xor_b32 v{vDt}, 0x4000, v{vXown}"), ('d', f"ds_read_b64 v[{vS2}:{vS3}], v{vDt} offset:4096")]
            if t < 7: full_step(jobs_pv(t), jobs_op(t), jobs_pv(t + 1), addr_v(), addr_wo(), dm, ex, hd, fx)
            else: full_step(jobs_pv(t), jobs_op(t), jobs_qk(0), addr_k(), addr_wq(), dm, ex, hd, fx)
        g.stamp(1)
        A(f"s_add_u32 s{sKVoff}, s{sKVoff}, 131072")
        A(f"s_add_u32 s{sWoOff}, s{sWoOff}, 131072")
        A(f"s_add_u32 s{sWqOff}, s{sWqOff}, 256")
        A(f"s_add_u32 s{sH}, s{sH}, 1")
        A(f"s_cmp_ge_u32 s{sH}, 7"); A(f"s_cselect_b32 s{sWqOff}, 0x80000000, s{sWqOff}")
        A(f"s_cmp_lt_u32 s{sH}, 8"); A("s_cbranch_scc1 L_head")

    def tail():
        g.stamp(0)
        A("s_waitcnt vmcnt(0) lgkmcnt(0)")
        A("s_barrier")
        for k, s in h_partial_write(): put(k, s)
        for t in range(8):
            for d in dma_wo(t, ("E", t), t * 16384): emit_dma(d)
        for e in x_factors(): put(e[1], e[2])
        A("s_waitcnt lgkmcnt(0)")
        A("s_barrier")
        for k, s in h_partial_read(): put(k, s)
        A("s_waitcnt lgkmcnt(0)")
        for e in x_merge(0) + x_merge(1): put(e[1], e[2])
        A("s_waitcnt vmcnt(0) lgkmcnt(0)")
        A("s_barrier")
        g.stamp(0)
        for f in range(8):
            g.ds(f"ds_read_b128 v[{QF+4*f}:{QF+4*f+3}], v{vXq} offset:{(f>>2)*16384 + (f&3)*1024}")
        A(f"v_mov_b32 v{ADW}, v{vWOB}"); A(f"v_add_u32 v{ADK}, 0x10000, v{vWOB}")
        for i in range(1, 4):
            A(f"v_xor_b32 v{ADW+i}, {i<<6}, v{ADW}"); A(f"v_xor_b32 v{ADK+i}, {i<<6}, v{ADK}")
        A(f"s_mov_b32 s{sXS}, s58"); A(f"s_mov_b32 s{sXS+1}, s59"); A(f"s_mov_b32 s{sXS+2}, 0x2000000"); A(f"s_mov_b32 s{sXS+3}, 0x20000")
        sh = 16 if cfg.pbf16 else 17
        A(f"s_lshl_b32 s{sT0}, s{sBR}, 5"); A(f"s_add_u32 s{sT0}, s{sT0}, s{sB}"); A(f"s_lshl_b32 s{sT0}, s{sT0}, 2"); A(f"s_add_u32 s{sT0}, s{sT0}, s{sHG}")
        A(f"s_lshl_b32 s{sT0}, s{sT0}, {sh}"); A(f"s_lshl_b32 s{sT1}, s{sWave}, {sh-2}"); A(f"s_add_u32 s5, s{sT0}, s{sT1}")
        alljobs = []
        for i in range(8):
            for t in range(8):
                def rd(dst, i=i, t=t):
                    r = (ADW if t < 4 else ADK) + (i & 3)
                    return [('d', f"ds_read_b64_tr_b16 v[{dst+2*h}:{dst+2*h+1}], v{r} offset:{(t&3)*16384 + h*4096 + (i>>2)*256}") for h in range(2)]
                def mf(a, i=i, t=t):
                    d = AOUT + 16 * i
                    return f"v_mfma_f32_32x32x16_bf16 a[{d}:{d+15}], v[{a}:{a+3}], v[{QF+4*t}:{QF+4*t+3}], a[{d}:{d+15}]"
                alljobs.append((rd, mf))
        def store_items(i):
            gs = []
            if cfg.pbf16:
                tb = 32 * (i & 1)
                for ap in range(2):
                    for hh in range(2):
                        k0 = 8 * ap + 4 * hh
                        gs.append([f"v_accvgpr_read_b32 v{tb+k0+k}, a{AOUT+16*i+k0+k}" for k in range(4)] +
                                  [f"v_cvt_pk_bf16_f32 v{tb+16+4*ap+2*hh+k}, v{tb+k0+2*k}, v{tb+k0+2*k+1}" for k in range(2)])
                    gs[-1] += [f"s_add_u32 s{sT0}, s5, {i*2048}",
                               f"buffer_store_dwordx4 v[{tb+16+4*ap}:{tb+19+4*ap}], v{vDWO}, s[{sXS}:{sXS+3}], s{sT0} offen offset:{ap*1024}{cfg.stflags}"]
            else:
                for a in range(4):
                    r = AOUT + 16 * i + 4 * a
                    gs.append([f"s_add_u32 s{sT0}, s5, {i*4096}",
                               f"buffer_store_dwordx4 a[{r}:{r+3}], v{vDWO}, s[{sXS}:{sXS+3}], s{sT0} offen offset:{a*1024}{cfg.stflags}"])
            return gs
        LA = 7
        for j in range(LA): issue_reads(alljobs[j], j % NB)
        for j in range(64):
            b = j % NB
            w = g.cnt - pos[b]
            if w < 500: A(f"s_waitcnt lgkmcnt({min(w, 15)})")
            A(alljobs[j][1](FB + 4 * b))
            n = j + LA
            if n < 64: issue_reads(alljobs[n], n % NB)
            blk, k = j // 8, j % 8
            if blk >= 1 and 3 <= k <= 6:
                for s in store_items(blk - 1)[k - 3]: A(s)
        g.stamp(0)
        A("s_nop 7"); A("s_nop 3")
        for gs in store_items(7):
            for s in gs: A(s)
        A("s_waitcnt vmcnt(0)")
        if cfg.prof:
            g.stamp(0)
            A(f"s_mov_b32 s{sXS+2}, 0x4000000")
            A(f"s_lshl_b32 s{sT0}, s2, 2"); A(f"s_add_u32 s{sT0}, s{sT0}, s{sWave}"); A(f"s_lshl_b32 s{sT0}, s{sT0}, 9"); A(f"s_add_u32 s{sT0}, s{sT0}, 0x2000000")
            A("v_mov_b32 v1, 0")
            for k in range(26): A(f"v_writelane_b32 v1, s{sST+k}, {k}")
            A(f"v_lshrrev_b32 v0, 2, v{vDWO}")
            A(f"buffer_store_dword v1, v0, s[{sXS}:{sXS+3}], s{sT0} offen")
            A("s_waitcnt vmcnt(0)")
        A("L_end:")
        A("s_endpgm")

    def reduce_kernel():
        A(f".globl {RN}"); A(".p2align 8"); A(f".type {RN},@function"); A(f"{RN}:")
        A("s_cmp_ge_u32 s2, 512"); A("s_cbranch_scc1 L_rend")
        A("s_load_dwordx2 s[4:5], s[0:1], 96")
        A("s_load_dwordx2 s[6:7], s[0:1], 80")
        A("s_lshr_b32 s16, s2, 3"); A("s_and_b32 s17, s2, 7")
        A("v_and_b32 v1, 63, v0"); A("v_lshrrev_b32 v2, 6, v0")
        if cfg.pbf16:
            A("v_lshlrev_b32 v3, 4, v1"); A("v_lshl_add_u32 v3, v2, 14, v3")
            A("s_lshl_b32 s18, s16, 18"); A("s_lshl_b32 s19, s17, 11"); A("s_add_u32 s18, s18, s19")
        else:
            A("v_lshlrev_b32 v3, 4, v1"); A("v_lshl_add_u32 v3, v2, 15, v3")
            A("s_lshl_b32 s18, s16, 19"); A("s_lshl_b32 s19, s17, 12"); A("s_add_u32 s18, s18, s19")
        A("s_waitcnt lgkmcnt(0)")
        A("s_mov_b32 s8, s4"); A("s_mov_b32 s9, s5"); A("s_mov_b32 s10, 0x2000000"); A("s_mov_b32 s11, 0x20000")
        A("s_mov_b32 s12, s6"); A("s_mov_b32 s13, s7"); A("s_mov_b32 s14, 0x400000"); A("s_mov_b32 s15, 0x20000")
        for hg in range(4):
            if cfg.pbf16:
                A(f"s_add_u32 s19, s18, {hg*65536}")
                for ap in range(2):
                    r = 40 + 8 * hg + 4 * ap
                    A(f"buffer_load_dwordx4 v[{r}:{r+3}], v3, s[8:11], s19 offen offset:{ap*1024}{cfg.rdflags}")
            else:
                A(f"s_add_u32 s19, s18, {hg*131072}")
                for a in range(4):
                    r = 8 + 16 * hg + 4 * a
                    A(f"buffer_load_dwordx4 v[{r}:{r+3}], v3, s[8:11], s19 offen offset:{a*1024}{cfg.rdflags}")
        A("s_and_b32 s20, s16, 31"); A("s_lshr_b32 s21, s16, 5")
        A("s_lshl_b32 s20, s20, 17")
        A("s_lshl_b32 s21, s21, 10"); A("s_add_u32 s20, s20, s21")
        A("s_lshl_b32 s21, s17, 6"); A("s_add_u32 s20, s20, s21")
        A("v_and_b32 v4, 31, v1"); A("v_and_b32 v5, 1, v2"); A("v_lshl_add_u32 v4, v5, 5, v4"); A("v_lshlrev_b32 v4, 11, v4")
        A("v_lshrrev_b32 v5, 1, v2"); A("v_lshl_add_u32 v4, v5, 9, v4")
        A("v_lshrrev_b32 v5, 5, v1"); A("v_lshl_add_u32 v4, v5, 4, v4")
        if cfg.pbf16:
            for hg in range(4):
                A(f"s_waitcnt vmcnt({6 - 2*hg})")
                for k in range(8):
                    r = 40 + 8 * hg + k
                    if hg == 0:
                        A(f"v_lshlrev_b32 v{8+2*k}, 16, v{r}"); A(f"v_and_b32 v{9+2*k}, 0xffff0000, v{r}")
                    else:
                        A(f"v_lshlrev_b32 v6, 16, v{r}"); A(f"v_and_b32 v7, 0xffff0000, v{r}")
                        A(f"v_add_f32 v{8+2*k}, v{8+2*k}, v6"); A(f"v_add_f32 v{9+2*k}, v{9+2*k}, v7")
        else:
            A("s_waitcnt vmcnt(8)")
            for k in range(16): A(f"v_add_f32 v{8+k}, v{8+k}, v{24+k}")
            A("s_waitcnt vmcnt(0)")
            for k in range(16): A(f"v_add_f32 v{40+k}, v{40+k}, v{56+k}")
            for k in range(16): A(f"v_add_f32 v{8+k}, v{8+k}, v{40+k}")
        for j in range(8): A(f"v_cvt_pk_bf16_f32 v{24+j}, v{8+2*j}, v{9+2*j}")
        A("buffer_store_dwordx4 v[24:27], v4, s[12:15], s20 offen")
        A("buffer_store_dwordx4 v[28:31], v4, s[12:15], s20 offen offset:32")
        A("s_waitcnt vmcnt(0)")
        A("L_rend:")
        A("s_endpgm")
        A('.section .rodata,"a"')
        A(".p2align 6"); A(f".amdhsa_kernel {KN}")
        A("  .amdhsa_next_free_vgpr 512"); A("  .amdhsa_next_free_sgpr 102"); A("  .amdhsa_accum_offset 256")
        A("  .amdhsa_group_segment_fixed_size 0"); A("  .amdhsa_kernarg_size 104"); A("  .amdhsa_user_sgpr_count 2")
        A("  .amdhsa_user_sgpr_kernarg_segment_ptr 1"); A("  .amdhsa_system_sgpr_workgroup_id_x 1"); A(".end_amdhsa_kernel")
        A(".p2align 6"); A(f".amdhsa_kernel {RN}")
        A("  .amdhsa_next_free_vgpr 72"); A("  .amdhsa_next_free_sgpr 32"); A("  .amdhsa_accum_offset 72")
        A("  .amdhsa_group_segment_fixed_size 0"); A("  .amdhsa_kernarg_size 104"); A("  .amdhsa_user_sgpr_count 2")
        A("  .amdhsa_user_sgpr_kernarg_segment_ptr 1"); A("  .amdhsa_system_sgpr_workgroup_id_x 1"); A(".end_amdhsa_kernel")

    g.emit = False; g.q = []
    prologue(); stage_P()
    for h in range(8): head(h)
    back = dict(pos); backcnt = g.cnt
    tail()
    g.emit = True; g.q = []; g.cnt = 0; g.lab = 0
    prologue(); stage_P()
    for b in range(NB): pos[b] = g.cnt - (backcnt - back[b])
    head(0); tail(); reduce_kernel()
    if "-v" in sys.argv: print(g.req)
    return "\n".join(g.L) + "\n"

if __name__ == "__main__":
    out = sys.argv[1]
    for a in sys.argv[2:]:
        if "=" in a:
            k, v = a.split("=", 1)
            setattr(Cfg, k, eval(v))
    open(out, "w").write(gen())
```

```python
import sys, struct, math

KN = "concat_heads__mha_block_cached__mha_block_cached__near_ridge_kernel"
RN = "mha_reduce_kernel"

class Cfg:
    NKV = 5
    NW = 3
    warm = True
    wmode = 'bulkP'
    prof = False
    prof_head = 3
    dma_pos = [0, 2, 4, 6, 8, 10, 12, 14, 15]
    stflags = ''
    wplan = [(-1, 0, 14), (7, 14, 18)]
    rdflags = ''
    pbf16 = True
    WARMALL = ['o0', 'q2', 'o1', 'q3', 'o2', 'q4', 'o3', 'q5', 'o4', 'q6', 'o5', 'q7', 'o6', 'o7']
    pro = ['q0', 'x0', 'w0', 'x1', 'w1', 'q1', 'x2', 'w2', 'x3', 'w3', 'x4', 'w4', 'x5', 'x6', 'x7', 'k0'] + WARMALL
    pplan = [[], ['w5'], ['w6', 'k1'], ['w7'], ['k2'], [], ['w8', 'k3'], ['w9', 'p4']]
    loopwarm = False
    wo7 = True
    kvfirst = False
    rtiles = 1
    wl = ''
    xl = ''
    wmf = ''

def f32bits(x):
    return struct.unpack("<I", struct.pack("<f", x))[0]

NB = 8
QF = 128; QA = 160
ACC = [32, 48, 160, 176]
def Sreg(t): return 16 * t
def Preg(t): return 8 * t if t < 4 else 64 + 8 * (t - 4)
FB = 192; ADK = 224; ADW = 228
vKB, vVB, vWQB, vWOB = 232, 233, 234, 235
vDK, vDV, vDWO, vDWQ, vDt = 236, 237, 238, 239, 240
vXown, vXq, vDummy = 241, 242, 243
OFr = 244
vMx, vMc, vL, vAl, vS0, vS1, vS2, vS3 = 248, 249, 250, 251, 252, 253, 254, 255
AOUT = 0; AX = 128

sK, sV, sWQ, sWO, sXS = 8, 12, 16, 20, 24
sRole, sH, sKVoff, sWoOff, sWqOff = 28, 29, 30, 31, 32
sPkv, sPw, sKVc, sWc, sC, sT0, sT1, sWave, sHW = 33, 34, 60, 61, 62, 63, 64, 65, 66
sB, sHG, sBR, sW4 = 67, 68, 69, 71
sWarmQ, sWarmO = 74, 75
sST = 76

class Gen:
    def __init__(self, cfg):
        self.cfg = cfg; self.req = {}; self.L = []; self.emit = False; self.q = []; self.lab = 0; self.cnt = 0
        self.nst = 0
    def A(self, s):
        if self.emit: self.L.append(s)
    def newlab(self, p):
        self.lab += 1
        return f"L_{p}_{self.lab}"
    def ds(self, s):
        self.A(s); self.cnt += 1
    def vm(self, s, tag):
        self.A(s); self.q.append(tag)
    def vwait(self, site, tags):
        idx = max([i for i, t in enumerate(self.q) if t in tags], default=-1)
        c = len(self.q) - 1 - idx
        if not self.emit: self.req[site] = min(self.req.get(site, 63), c)
        else: self.A(f"s_waitcnt vmcnt({min(self.req[site], 63)})")
    def stamp(self, inloop):
        if not self.cfg.prof or not self.emit: return
        if bool(inloop) != (self.cfg.prof == 'loop'): return
        A = self.A
        k = self.nst; self.nst += 1
        assert k < 26
        if inloop:
            l = self.newlab("st")
            A(f"s_cmp_lg_u32 s{sH}, {self.cfg.prof_head}"); A(f"s_cbranch_scc1 {l}")
        A("s_memtime s[72:73]"); A("s_waitcnt lgkmcnt(0)")
        A(f"s_mov_b32 s{sST+k}, s72")
        if inloop: A(f"{l}:")

def gen(cfg=Cfg):
    g = Gen(cfg)
    NKV, NW = cfg.NKV, cfg.NW
    DKV, DW = NKV - 1, NW - 1
    assert DKV >= DW + 2 and NW == 3 and NKV == 5
    KVBASE = 0; WBASE = NKV * 16384; XBASE = WBASE + NW * 16384; LDS = XBASE + 32768
    assert LDS <= 163840 and XBASE % 32768 == 0
    XST = KVBASE + 16384
    PSLOT = [WBASE, WBASE + 16384, WBASE + 32768, XBASE, XBASE + 16384, WBASE, WBASE + 16384, WBASE + 32768]
    A = g.A

    def adv(reg, base, n):
        return [f"s_add_u32 s{reg}, s{reg}, 16384", f"s_cmp_ge_u32 s{reg}, {base + n*16384}", f"s_cselect_b32 s{reg}, {base}, s{reg}"]
    def advp(reg, base, n):
        return [f"s_add_u32 s{reg}, s{reg}, 16384", f"s_cmp_ge_u32 s{reg}, {base + n*16384}", f"s_cselect_b32 s{sT1}, {n*16384}, 0", f"s_sub_u32 s{reg}, s{reg}, s{sT1}"]
    def vo_x(base, i):
        if i == 0: return ["s_nop 0"], base
        return [f"v_xor_b32 v{vDt}, {i<<6}, v{base}"], vDt
    def dma_kv(m, tag):
        tt, carry = m & 15, m >> 4
        srd = sK if tt < 8 else sV
        off = (tt & 7) * 16384 + carry * 131072
        gs = []
        for i in range(4):
            if tt < 8: p2, vo = vo_x(vDK, i)
            else: p2, vo = ["s_nop 0"], vDV
            pre = [f"s_add_u32 s{sT0}, s{sKVoff}, {off}", f"s_mov_b32 m0, s{sPkv}"] + p2
            ld = f"buffer_load_dwordx4 v{vo}, s[{srd}:{srd+3}], s{sT0} offen offset:{i*1024} nt lds"
            gs.append((pre, ld, advp(sPkv, KVBASE, NKV) if i == 3 else [], tag))
        return gs
    def dma_wo(tile, tag, slot=None):
        gs = []
        for i in range(4):
            p2, vo = vo_x(vDWO, i)
            m0 = f"s_mov_b32 m0, s{sPw}" if slot is None else f"s_add_u32 m0, s{sW4}, {slot}"
            pre = [f"s_add_u32 s{sT0}, s{sWoOff}, {tile*16384}", m0] + p2
            ld = f"buffer_load_dwordx4 v{vo}, s[{sWO}:{sWO+3}], s{sT0} offen offset:{i*1024}{cfg.wl} lds"
            gs.append((pre, ld, advp(sPw, WBASE, NW) if (i == 3 and slot is None) else [], tag))
        return gs
    def dma_wq(tile, dh, tag, slot=None):
        gs = []
        for i in range(4):
            m0 = f"s_add_u32 m0, s{sPw}, {i*1024}" if slot is None else f"s_add_u32 m0, s{sW4}, {slot + i*1024}"
            pre = [f"s_add_u32 s{sT0}, s{sWqOff}, {tile*524288 + i*32768 + dh*256}", m0, "s_nop 0"]
            ld = f"buffer_load_dwordx4 v{vDWQ}, s[{sWQ}:{sWQ+3}], s{sT0} offen{cfg.wl} lds"
            gs.append((pre, ld, advp(sPw, WBASE, NW) if (i == 3 and slot is None) else [], tag))
        return gs
    def xblk(t):
        return [([f"s_add_u32 s{sT0}, s4, {j*8192 + t*128}", f"s_add_u32 m0, s5, {XST + t*8192 + j*1024}", "s_nop 0"],
                 f"buffer_load_dwordx4 v{14+j}, s[{sXS}:{sXS+3}], s{sT0} offen{cfg.xl} lds", [], ("x", t)) for j in range(2)]
    def plan_items(items):
        dm = []
        for it in items:
            k, n = it[0], int(it[1:])
            if k == 'x': dm += xblk(n)
            elif k == 'w': dm += dma_wq(n, 0, ("W", n), PSLOT[n]) if n < 8 else dma_wq(n - 8, 1, ("W", n))
            elif k == 'k': dm += dma_kv(n, ("KV", n))
            elif k == 'p': dm += [([], f"buffer_load_dword v{vDummy}, v{vDWO}, s[{sWO}:{sWO+3}], s6 offen", [], "pad")] * n
            elif k == 'q': dm += [warm_wq(n)]
            elif k == 'o': dm += [warm_wo(n + 1)]
        return dm
    def warm_wq(dh):
        return ([f"s_add_u32 s{sT0}, s{sWqOff}, s{sWarmQ}"] + ([f"s_add_u32 s{sT0}, s{sT0}, {dh*256}"] if dh else []),
                f"buffer_load_dword v{vDummy}, v{vDWQ}, s[{sWQ}:{sWQ+3}], s{sT0} offen{cfg.wmf}", [], "warm")
    def warm_wo(dh):
        return ([f"s_add_u32 s{sT0}, s{sWoOff}, s{sWarmO}", f"s_add_u32 s{sT0}, s{sT0}, {dh*131072}"],
                f"buffer_load_dword v{vDummy}, v{vDWO}, s[{sWO}:{sWO+3}], s{sT0} offen{cfg.wmf}", [], "warm")
    def emit_dma(gr):
        pre, ld, post, tag = gr
        for s in pre: A(s)
        g.vm(ld, tag)
        for s in post: A(s)
    def dma_w_loop(h, tg):
        m = tg + DW
        tag = ("W", 8 + 16 * h + m)
        if m < 8: return dma_wq(m, 0, tag)
        if m < 16: return dma_wo(m - 8, tag)
        return dma_wq(m - 16, 1, tag)
    def dma_kv_loop(h, tg):
        return dma_kv(tg + DKV, ("KV", 16 * h + tg + DKV))

    def jobs_qk(t):
        js = []
        for s in range(8):
            def rd(dst, s=s):
                if s == 0: return [('d', f"ds_read_b128 v[{dst}:{dst+3}], v{ADK}")]
                tmp = ADK + 1 + (s & 1)
                return [('v', f"v_xor_b32 v{tmp}, {s<<5}, v{ADK}"), ('d', f"ds_read_b128 v[{dst}:{dst+3}], v{tmp}")]
            def mf(a, s=s, t=t):
                d = Sreg(t)
                c = "0" if s == 0 else f"v[{d}:{d+15}]"
                return f"v_mfma_f32_32x32x16_bf16 v[{d}:{d+15}], v[{a}:{a+3}], v[{QF+4*s}:{QF+4*s+3}], {c}"
            js.append((rd, mf))
        return js
    def jobs_op(t, breg=OFr):
        js = []
        for i in range(8):
            def rd(dst, i=i):
                return [('d', f"ds_read_b64_tr_b16 v[{dst+2*h}:{dst+2*h+1}], v{ADW+(i&3)} offset:{h*4096 + (i>>2)*256}") for h in range(2)]
            def mf(a, i=i):
                d = AOUT + 16 * i
                return f"v_mfma_f32_32x32x16_bf16 a[{d}:{d+15}], v[{a}:{a+3}], v[{breg}:{breg+3}], a[{d}:{d+15}]"
            js.append((rd, mf))
        return js
    def jobs_pv(t):
        js = []
        for (u, i) in [(0, 0), (0, 1), (1, 0), (1, 1), (0, 2), (0, 3), (1, 2), (1, 3)]:
            def rd(dst, i=i, u=u):
                return [('d', f"ds_read_b64_tr_b16 v[{dst+2*h}:{dst+2*h+1}], v{ADK+i} offset:{u*4096 + h*2048}") for h in range(2)]
            def mf(a, i=i, u=u, t=t):
                d = ACC[i]
                c = "0" if (t == 0 and u == 0) else f"v[{d}:{d+15}]"
                p = Preg(t) + 4 * u
                return f"v_mfma_f32_32x32x16_bf16 v[{d}:{d+15}], v[{a}:{a+3}], v[{p}:{p+3}], {c}"
            js.append((rd, mf))
        return js
    def jobs_qp(t):
        js = []
        for s in range(4):
            for i in range(2):
                def rd(dst, i=i, s=s):
                    return [('d', f"ds_read_b64_tr_b16 v[{dst+2*h}:{dst+2*h+1}], v{ADW+i} offset:{s*4096 + h*1024}") for h in range(2)]
                def mf(a, i=i, s=s, t=t):
                    d = QA + 16 * i
                    c = "0" if (t == 0 and s == 0) else f"v[{d}:{d+15}]"
                    x = AX + 4 * (4 * t + s)
                    return f"v_mfma_f32_32x32x16_bf16 v[{d}:{d+15}], v[{a}:{a+3}], a[{x}:{x+3}], {c}"
                js.append((rd, mf))
        return js
    def addr_k(): return adv(sKVc, KVBASE, NKV) + [f"v_add_u32 v{ADK}, s{sKVc}, v{vKB}"]
    def addr_v(): return adv(sKVc, KVBASE, NKV) + [f"v_add_u32 v{ADK}, s{sKVc}, v{vVB}"] + [f"v_xor_b32 v{ADK+i}, {i<<6}, v{ADK}" for i in range(1, 4)]
    def addr_wo(): return adv(sWc, WBASE, NW) + [f"v_add_u32 v{ADW}, s{sWc}, v{vWOB}"] + [f"v_xor_b32 v{ADW+i}, {i<<6}, v{ADW}" for i in range(1, 4)]
    def addr_wq(): return adv(sWc, WBASE, NW) + [f"v_add_u32 v{ADW}, s{sWc}, v{vWQB}", f"v_xor_b32 v{ADW+1}, 64, v{ADW}"]

    pos = {}
    def put(kind, text):
        if kind == 'd': g.ds(text)
        else: A(text)
    def issue_reads(job, b):
        for k, s in job[0](FB + 4 * b): put(k, s)
        pos[b] = g.cnt
    def cost(it):
        return 2 if it[2].startswith(("v_exp", "v_rcp")) else 1

    def full_step(kvjobs, wjobs, nxt_kvjobs, nxt_kv_addr, nxt_w_addr, dmas, extras=(), head=(), fixed=None, drained=False):
        jobs = kvjobs + wjobs
        if drained:
            for b in range(NB): pos[b] = -1000
        for k, s in head: put(k, s)
        dq = list(dmas); ex = list(extras); fixed = fixed or {}
        for j in range(16):
            b = j % NB
            w = g.cnt - pos[b]
            if w < 500: A(f"s_waitcnt lgkmcnt({min(w, 15)})")
            A(jobs[j][1](FB + 4 * b))
            if j < 8: issue_reads(jobs[j + 8], b)
            if j == 7:
                for s in nxt_kv_addr: A(s)
                for s in nxt_w_addr: A(s)
            if j >= 8 and nxt_kvjobs: issue_reads(nxt_kvjobs[j - 8], b)
            for k, s in fixed.get(j, []): put(k, s)
            if j in cfg.dma_pos and dq: emit_dma(dq.pop(0))
            rem = sum(cost(e) for e in ex)
            quota = math.ceil(rem / (16 - j))
            used = 0
            while ex and ex[0][0] <= j and used < quota:
                e = ex.pop(0); put(e[1], e[2]); used += cost(e)
        for d in dq: emit_dma(d)
        for e in ex: put(e[1], e[2])

    def half_step(wjobs, dmas):
        for j in range(8): issue_reads(wjobs[j], j)
        dq = list(dmas)
        for j in range(8):
            w = g.cnt - pos[j]
            if w < 500: A(f"s_waitcnt lgkmcnt({min(w, 15)})")
            A(wjobs[j][1](FB + 4 * j))
            if dq and (j % 2 == 0 or len(dq) > 8 - j): emit_dma(dq.pop(0))
            if len(dq) > 2 * (8 - j): emit_dma(dq.pop(0))
        for d in dq: emit_dma(d)

    def x_max(t, first=False, e=0):
        b = Sreg(t); out = []
        if first:
            out.append((e, 'v', f"v_max_f32 v{vMx}, v{b}, v{b+1}")); k0 = 2
        else: k0 = 0
        for k in range(k0, 16, 2): out.append((e, 'v', f"v_max3_f32 v{vMx}, v{vMx}, v{b+k}, v{b+k+1}"))
        return out
    def x_crossmax(e=0):
        return [(e, 'v', f"v_mov_b32 v{vAl}, v{vMx}"), (e, 'v', "s_nop 1"), (e, 'v', f"v_permlane32_swap_b32 v{vMx}, v{vAl}"),
                (e, 'v', f"v_max_f32 v{vMx}, v{vMx}, v{vAl}")]
    def x_exp(t, e=0):
        b = Sreg(t); p = Preg(t); out = []
        for j in range(9):
            if j < 8:
                out += [(e, 'v', f"v_fma_f32 v{b+2*j}, v{b+2*j}, s{sC}, -v{vMc}"), (e, 'v', f"v_fma_f32 v{b+2*j+1}, v{b+2*j+1}, s{sC}, -v{vMc}"),
                        (e, 'v', f"v_exp_f32 v{b+2*j}, v{b+2*j}"), (e, 'v', f"v_exp_f32 v{b+2*j+1}, v{b+2*j+1}")]
            else:
                out += [(e, 'v', "s_nop 0")]
            if j > 0:
                k = j - 1
                out += [(e, 'v', f"v_add_f32 v{vL}, v{vL}, v{b+2*k}"), (e, 'v', f"v_add_f32 v{vL}, v{vL}, v{b+2*k+1}"),
                        (e, 'v', f"v_cvt_pk_bf16_f32 v{p+k}, v{b+2*k}, v{b+2*k+1}")]
        return out
    def x_factors(e=0):
        return [(e, 'v', s) for s in [
            f"v_max_f32 v{vAl}, v{vS0}, v{vS2}", f"v_sub_f32 v{vS0}, v{vS0}, v{vAl}", f"v_sub_f32 v{vS2}, v{vS2}, v{vAl}",
            f"v_exp_f32 v{vS0}, v{vS0}", f"v_exp_f32 v{vS2}, v{vS2}", "s_nop 0",
            f"v_mul_f32 v{vS1}, v{vS1}, v{vS0}", f"v_fma_f32 v{vS1}, v{vS3}, v{vS2}, v{vS1}", f"v_rcp_f32 v{vS1}, v{vS1}", "s_nop 0",
            f"v_mul_f32 v{vS0}, v{vS0}, v{vS1}", f"v_mul_f32 v{vS1}, v{vS2}, v{vS1}"]]
    def x_merge(i, e=0):
        a = ACC[i]; r = 64 + 16 * i; p = 96 + 8 * i; out = []
        for j in range(8):
            for k in (2 * j, 2 * j + 1):
                out += [(e, 'v', f"v_mul_f32 v{a+k}, v{a+k}, v{vS0}"), (e, 'v', f"v_fma_f32 v{a+k}, v{r+k}, v{vS1}, v{a+k}")]
            out.append((e, 'v', f"v_cvt_pk_bf16_f32 v{p+j}, v{a+2*j}, v{a+2*j+1}"))
            if j in (3, 7):
                f = 2 * i + (j >> 2)
                out.append((e, 'd', f"ds_write_b128 v{vXown}, v[{96+4*f}:{99+4*f}] offset:{f*1024}"))
        return out
    def h_partial_write():
        out = [('v', f"v_xor_b32 v{vDt}, 0x4000, v{vXown}")]
        for k in range(8):
            r = ACC[2 + (k >> 2)] + 4 * (k & 3)
            out.append(('d', f"ds_write_b128 v{vDt}, v[{r}:{r+3}] offset:{k*1024}"))
        return out
    def h_partial_read():
        return [('d', f"ds_read_b128 v[{64+4*k}:{67+4*k}], v{vXown} offset:{k*1024}") for k in range(8)]
    def qpack(f):
        return [('v', f"v_cvt_pk_bf16_f32 v{QF+4*f+j}, v{QA+8*f+2*j}, v{QA+8*f+2*j+1}") for j in range(4)]
    def qwrite():
        return [('d', f"ds_write_b128 v{vXown}, v[{QF+4*f}:{QF+4*f+3}] offset:{4096 + f*1024}") for f in range(4)]
    def qread():
        return [('d', f"ds_read_b128 v[{QF+4*f}:{QF+4*f+3}], v{vXq} offset:{(f>>2)*16384 + (f&3)*1024 + 4096}") for f in range(8)]

    def prologue():
        A(f"; @launch kernel={KN} grid=(256,1,1) block=(256,1,1) lds={LDS}")
        A(f"; @launch kernel={RN} grid=({512//cfg.rtiles},1,1) block=(256,1,1) lds=0")
        A('.amdgcn_target "amdgcn-amd-amdhsa--gfx950"')
        A(".text")
        A(f".globl {KN}"); A(".p2align 8"); A(f".type {KN},@function"); A(f"{KN}:")
        A("s_cmp_ge_u32 s2, 256"); A("s_cbranch_scc1 L_end")
        A("s_load_dwordx8 s[36:43], s[0:1], 0")
        A("s_load_dwordx2 s[44:45], s[0:1], 32")
        A("s_load_dwordx8 s[48:55], s[0:1], 40")
        A("s_load_dwordx2 s[56:57], s[0:1], 72")
        A("s_load_dwordx2 s[58:59], s[0:1], 96")
        A(f"s_lshr_b32 s{sBR}, s2, 2"); A(f"s_and_b32 s{sBR}, s{sBR}, 1")
        A(f"s_and_b32 s{sHG}, s2, 3")
        A(f"s_lshr_b32 s{sB}, s2, 3")
        A("v_lshrrev_b32 v1, 6, v0")
        A("v_and_b32 v2, 63, v0")
        A(f"v_readfirstlane_b32 s{sWave}, v1")
        A("v_lshrrev_b32 v10, 4, v2"); A("v_and_b32 v11, 15, v2")
        A("v_lshlrev_b32 v12, 2, v10"); A("v_xor_b32 v12, v12, v11"); A("v_lshlrev_b32 v12, 4, v12")
        A(f"v_lshl_add_u32 v{vDV}, v10, 8, v12")
        A(f"v_lshl_add_u32 v{vDWQ}, v10, 13, v12")
        A("v_xor_b32 v13, v10, v11"); A("v_lshlrev_b32 v13, 4, v13"); A(f"v_lshl_add_u32 v{vDK}, v10, 8, v13")
        A(f"v_lshlrev_b32 v{vDWO}, 4, v2")
        A("s_waitcnt lgkmcnt(0)")
        A(f"s_cmp_eq_u32 s{sBR}, 0")
        for i in range(10):
            A(f"s_cselect_b32 s{36+i}, s{36+i}, s{48+i}")
        A(f"s_lshl_b32 s{sT0}, s{sB}, 22"); A(f"s_lshl_b32 s{sT1}, s{sHG}, 20"); A(f"s_add_u32 s{sT0}, s{sT0}, s{sT1}")
        A(f"s_add_u32 s{sK}, s38, s{sT0}"); A(f"s_addc_u32 s{sK+1}, s39, 0"); A(f"s_mov_b32 s{sK+2}, 0x100000"); A(f"s_mov_b32 s{sK+3}, 0x20000")
        A(f"s_add_u32 s{sV}, s40, s{sT0}"); A(f"s_addc_u32 s{sV+1}, s41, 0"); A(f"s_mov_b32 s{sV+2}, 0x100000"); A(f"s_mov_b32 s{sV+3}, 0x20000")
        A(f"s_lshl_b32 s{sT0}, s{sHG}, 11")
        A(f"s_add_u32 s{sWQ}, s42, s{sT0}"); A(f"s_addc_u32 s{sWQ+1}, s43, 0"); A(f"s_sub_u32 s{sWQ+2}, 0x400000, s{sT0}"); A(f"s_mov_b32 s{sWQ+3}, 0x20000")
        A(f"s_add_u32 s{sWO}, s44, s{sT1}"); A(f"s_addc_u32 s{sWO+1}, s45, 0"); A(f"s_mov_b32 s{sWO+2}, 0x100000"); A(f"s_mov_b32 s{sWO+3}, 0x20000")
        A(f"s_sub_u32 s46, s{sWO}, 0x20000"); A(f"s_subb_u32 s47, s{sWO+1}, 0")
        A(f"s_lshl_b32 s{sT0}, s{sB}, 16")
        A(f"s_add_u32 s{sXS}, s36, s{sT0}"); A(f"s_addc_u32 s{sXS+1}, s37, 0"); A(f"s_mov_b32 s{sXS+2}, 0x10000"); A(f"s_mov_b32 s{sXS+3}, 0x20000")
        A(f"s_lshr_b32 s{sRole}, s{sWave}, 1")
        A(f"s_and_b32 s{sHW}, s{sWave}, 1")
        A(f"s_lshl_b32 s{sW4}, s{sWave}, 12")
        A(f"s_mov_b32 s{sC}, 0x{f32bits(128 ** -0.5 * 1.4426950408889634):08x}")
        A(f"s_add_u32 s{sPkv}, s{sW4}, {KVBASE}"); A(f"s_add_u32 s{sPw}, s{sW4}, {WBASE}")
        A(f"s_mov_b32 s{sKVoff}, s{sW4}")
        A(f"s_sub_u32 s{sWoOff}, s{sW4}, 131072")
        A(f"s_lshl_b32 s{sWqOff}, s{sWave}, 17")
        A(f"s_mov_b32 s{sKVc}, {KVBASE + (NKV-1)*16384}"); A(f"s_mov_b32 s{sWc}, {WBASE + (NW-1)*16384}")
        A(f"s_mov_b32 s{sH}, 0")
        A(f"s_lshl_b32 s{sWarmQ}, s{sB}, 17"); A(f"s_lshl_b32 s{sT0}, s{sWave}, 15"); A(f"s_add_u32 s{sWarmQ}, s{sWarmQ}, s{sT0}")
        A(f"s_sub_u32 s{sWarmQ}, s{sWarmQ}, s{sWqOff}")
        A(f"s_lshl_b32 s{sWarmO}, s{sB}, 12"); A(f"s_lshl_b32 s{sT0}, s{sWave}, 10"); A(f"s_add_u32 s{sWarmO}, s{sWarmO}, s{sT0}")
        A(f"s_sub_u32 s{sWarmO}, s{sWarmO}, s{sW4}")
        g.stamp(0)
        A("v_lshrrev_b32 v13, 3, v2"); A("v_and_b32 v14, 7, v2"); A("v_lshrrev_b32 v15, 1, v13"); A("v_xor_b32 v14, v14, v15")
        A("v_lshlrev_b32 v14, 4, v14"); A("v_lshl_add_u32 v14, v13, 10, v14"); A("v_xor_b32 v15, 64, v14")
        A(f"s_lshl_b32 s4, s{sWave}, 14"); A(f"s_lshl_b32 s5, s{sWave}, 11")
        A("s_mov_b32 s6, 0x80000000")
        for d in plan_items(cfg.pro): emit_dma(d)
        g.stamp(0)
        A("v_lshrrev_b32 v3, 5, v2"); A("v_and_b32 v4, 31, v2")
        A("v_bfe_u32 v5, v2, 4, 1"); A("v_bfe_u32 v6, v2, 2, 2"); A("v_and_b32 v7, 3, v2")
        A("v_and_b32 v8, 1, v7"); A("v_lshlrev_b32 v8, 1, v8"); A("v_lshrrev_b32 v9, 1, v7"); A("v_or_b32 v8, v8, v9")
        A("v_lshlrev_b32 v8, 3, v8"); A("v_lshl_add_u32 v8, v5, 5, v8")
        A(f"v_mov_b32 v9, s{sRole}")
        A("v_lshlrev_b32 v10, 5, v9"); A("v_lshl_add_u32 v10, v3, 2, v10"); A("v_add_u32 v10, v10, v6")
        A("v_lshlrev_b32 v11, 1, v9"); A("v_xor_b32 v11, v11, v6")
        A("v_lshlrev_b32 v10, 8, v10"); A("v_lshl_add_u32 v10, v11, 6, v10"); A(f"v_add_u32 v{vVB}, v10, v8")
        A("v_lshl_add_u32 v12, v3, 3, v6")
        A("v_lshlrev_b32 v10, 8, v12"); A("v_lshl_add_u32 v10, v11, 6, v10"); A(f"v_add_u32 v{vWQB}, v10, v8")
        A("v_lshlrev_b32 v10, 10, v12"); A("v_lshl_add_u32 v10, v9, 9, v10"); A("v_lshl_add_u32 v10, v6, 6, v10"); A(f"v_add_u32 v{vWOB}, v10, v8")
        A("v_lshl_add_u32 v10, v9, 5, v4"); A("v_and_b32 v11, 15, v4"); A("v_xor_b32 v11, v11, v3")
        A("v_lshlrev_b32 v10, 8, v10"); A(f"v_lshl_add_u32 v{vKB}, v11, 4, v10")
        A(f"s_lshl_b32 s{sT0}, s{sWave}, 13"); A(f"s_add_u32 s{sT0}, s{sT0}, {XBASE}")
        A(f"v_add_u32 v{vXown}, s{sT0}, v{vDWO}")
        A(f"s_lshl_b32 s{sT1}, s{sHW}, 13"); A(f"s_add_u32 s{sT1}, s{sT1}, {XBASE}")
        A(f"v_add_u32 v{vXq}, s{sT1}, v{vDWO}")
        A(f"s_lshl_b32 s{sT0}, s{sHW}, 12"); A(f"s_add_u32 s{sT0}, s{sT0}, {XST}")
        A("v_bfe_u32 v11, v4, 1, 3"); A("v_xor_b32 v11, v11, v3"); A("v_lshlrev_b32 v11, 4, v11")
        A("v_lshl_add_u32 v11, v4, 7, v11"); A(f"v_add_u32 v16, s{sT0}, v11")
        for s in range(1, 4): A(f"v_xor_b32 v{16+s}, {s<<5}, v16")
        for i in range(128): A(f"v_accvgpr_write_b32 a{AOUT+i}, 0")
        for i in range(32): A(f"v_mov_b32 v{32+i}, 0")
        A(f"v_mov_b32 v{vS0}, 0"); A(f"v_mov_b32 v{vS1}, 1.0"); A(f"v_mov_b32 v{vS2}, 0"); A(f"v_mov_b32 v{vS3}, 1.0")
        g.stamp(0)

    def warm_list():
        pad = ([], f"buffer_load_dword v{vDummy}, v{vDWO}, s[{sWO}:{sWO+3}], s6 offen", [], "pad")
        return [warm_wo(1), warm_wq(2), warm_wo(2), warm_wq(3), warm_wo(3), warm_wq(4), warm_wo(4), warm_wq(5), warm_wo(5), warm_wq(6),
              warm_wo(6), warm_wq(7), warm_wo(7), warm_wo(8), pad, pad, pad, pad]
    def stage_P():
        wl = warm_list()
        wl_old = [warm_wo(1), warm_wq(2), warm_wo(2), warm_wq(3), warm_wo(3), warm_wq(4), warm_wo(4), warm_wq(5), warm_wo(5), warm_wq(6),
              warm_wo(6), warm_wq(7), warm_wo(7), warm_wo(8)]
        for t in range(8):
            A(f"v_add_u32 v{ADW}, {PSLOT[t]}, v{vWQB}"); A(f"v_xor_b32 v{ADW+1}, 64, v{ADW}")
            g.vwait(("P", t), {("W", t), ("x", t)})
            A("s_barrier")
            g.stamp(0)
            for s in range(4):
                g.ds(f"ds_read_b128 a[{AX+16*t+4*s}:{AX+16*t+4*s+3}], v{16+s} offset:{t*8192}")
            dm = plan_items(cfg.pplan[t])
            half_step(jobs_qp(t), dm)
        A(f"s_add_u32 s{sWqOff}, s{sWqOff}, 256")
        for s in addr_k(): A(s)
        for s in addr_wq(): A(s)
        A("s_nop 7")
        for f in range(4):
            for k, s in qpack(f): put(k, s)
        for k, s in qwrite(): put(k, s)
        for i in range(32): A(f"v_mov_b32 v{QA+i}, 0")
        A("s_waitcnt lgkmcnt(0)")
        g.vwait(("PP",), {("KV", 0)})
        A("s_barrier")
        for k, s in qread(): put(k, s)
        js = jobs_qk(0)
        for j in range(8): issue_reads(js[j], j)
        A("s_waitcnt lgkmcnt(0)")
        g.stamp(0)
        A("L_head:")

    loopwarm = [warm_wq(1), warm_wo(1), warm_wq(2), warm_wo(2), warm_wq(3), warm_wo(3), warm_wq(4), warm_wo(4), warm_wq(5), warm_wo(5),
                warm_wq(6), warm_wo(6), warm_wo(7), warm_wo(8)]
    def head(h):
        for t in range(8):
            g.vwait(("A", t), {("W", 8 + 16 * h + t), ("KV", 16 * h + t + 1)})
            A("s_barrier")
            g.stamp(1)
            dm = dma_w_loop(h, t) + dma_kv_loop(h, t)
            if cfg.kvfirst: dm = dm[4:] + dm[:4]
            if cfg.loopwarm: dm += [loopwarm[t]]
            hd = []; ex = []
            if t == 0: hd = h_partial_write(); ex = x_factors()
            if t == 1: hd = h_partial_read(); ex = x_max(0, first=True) + x_merge(0, e=8)
            if t == 2: ex = x_merge(1) + x_max(1)
            if t == 3: ex = x_max(2)
            if t == 4:
                ex = x_max(3) + x_crossmax() + [(0, 'v', f"v_mul_f32 v{vMc}, s{sC}, v{vMx}"), (0, 'v', f"v_mov_b32 v{vL}, 0")] + x_exp(0)
            if t >= 5: ex = x_exp(t - 4) + x_max(t - 1)
            if t < 7: full_step(jobs_qk(t), jobs_qp(t), jobs_qk(t + 1), addr_k(), addr_wq(), dm, ex, hd)
            else: full_step(jobs_qk(t), jobs_qp(t), jobs_pv(0), addr_v(), addr_wo(), dm, ex, hd)
        for t in range(8):
            if t == 0 and cfg.wo7:
                A(f"s_cmp_lg_u32 s{sH}, 7"); A("s_cbranch_scc1 L_nosw")
                A(f"s_mov_b32 s{sK}, s46"); A(f"s_mov_b32 s{sK+1}, s47"); A(f"s_mov_b32 s{sK+2}, 0x120000")
                A(f"v_mov_b32 v{vDK}, v{vDWO}")
                A("L_nosw:")
            g.vwait(("B", t), {("W", 16 + 16 * h + t), ("KV", 16 * h + 8 + t + 1)})
            A("s_barrier")
            g.stamp(1)
            dm = dma_w_loop(h, 8 + t) + dma_kv_loop(h, 8 + t)
            if cfg.kvfirst: dm = dm[4:] + dm[:4]
            if cfg.loopwarm and 8 + t < len(loopwarm): dm += [loopwarm[8 + t]]
            hd = [('d', f"ds_read_b128 v[{OFr}:{OFr+3}], v{vXq} offset:{(t>>2)*16384 + (t&3)*1024}")]
            ex = []; fx = None
            if t == 0:
                fx = {0: qpack(0), 1: qpack(1), 2: qpack(2), 3: qpack(3), 4: qwrite()}
                ex = x_max(7, e=5) + x_crossmax(5) + [(5, 'v', s) for s in [
                    f"v_mul_f32 v{vS2}, s{sC}, v{vMx}", f"v_sub_f32 v{vAl}, v{vMc}, v{vS2}", f"v_exp_f32 v{vAl}, v{vAl}",
                    f"v_mov_b32 v{vMc}, v{vS2}", f"v_mul_f32 v{vL}, v{vL}, v{vAl}"]]
            if t == 1: hd += qread(); ex = x_exp(4)
            if t == 2: ex = x_exp(5)
            if t == 3:
                for i, e in [(0, 5), (1, 6), (2, 9), (3, 10)]:
                    ex += [(e, 'v', f"v_mul_f32 v{ACC[i]+k}, v{ACC[i]+k}, v{vAl}") for k in range(16)]
            if t == 4: ex = x_exp(6)
            if t == 5: ex = x_exp(7)
            if t == 6:
                fx = {0: [('v', f"v_mov_b32 v{vAl}, v{vL}"), ('v', f"v_mov_b32 v{vS0}, v{vMc}"), ('v', "s_nop 0"),
                          ('v', f"v_permlane32_swap_b32 v{vL}, v{vAl}")],
                      1: [('v', f"v_add_f32 v{vS1}, v{vL}, v{vAl}"), ('d', f"ds_write_b64 v{vXown}, v[{vS0}:{vS1}] offset:4096")]}
            if t == 7:
                hd += [('v', f"v_xor_b32 v{vDt}, 0x4000, v{vXown}"), ('d', f"ds_read_b64 v[{vS2}:{vS3}], v{vDt} offset:4096")]
            if t < 7: full_step(jobs_pv(t), jobs_op(t), jobs_pv(t + 1), addr_v(), addr_wo(), dm, ex, hd, fx)
            else: full_step(jobs_pv(t), jobs_op(t), jobs_qk(0), addr_k(), addr_wq(), dm, ex, hd, fx)
        g.stamp(1)
        A(f"s_add_u32 s{sKVoff}, s{sKVoff}, 131072")
        A(f"s_add_u32 s{sWoOff}, s{sWoOff}, 131072")
        A(f"s_add_u32 s{sWqOff}, s{sWqOff}, 256")
        A(f"s_add_u32 s{sH}, s{sH}, 1")
        if cfg.loopwarm: A(f"s_mov_b32 s{sWarmQ}, 0x40000000"); A(f"s_mov_b32 s{sWarmO}, 0x40000000")
        A(f"s_cmp_ge_u32 s{sH}, 7"); A(f"s_cselect_b32 s{sWqOff}, 0x80000000, s{sWqOff}")
        A(f"s_cmp_lt_u32 s{sH}, 8"); A("s_cbranch_scc1 L_head")

    def tail():
        g.stamp(0)
        ES = [3, 4, 0, 1, 2, 5, 6, 7] if cfg.wo7 else list(range(8))
        if cfg.wo7:
            g.vwait(("T0",), {("W", 8 + 16 * 8 + 1)})
            A("s_waitcnt lgkmcnt(0)")
        else:
            A("s_waitcnt vmcnt(0) lgkmcnt(0)")
        A("s_barrier")
        for k, s in h_partial_write(): put(k, s)
        for t in range(4 if cfg.wo7 else 0, 8):
            for d in dma_wo(t, ("E", t), ES[t] * 16384): emit_dma(d)
        for e in x_factors(): put(e[1], e[2])
        A("s_waitcnt lgkmcnt(0)")
        A("s_barrier")
        for k, s in h_partial_read(): put(k, s)
        A("s_waitcnt lgkmcnt(0)")
        for e in x_merge(0) + x_merge(1): put(e[1], e[2])
        A("s_waitcnt vmcnt(0) lgkmcnt(0)")
        A("s_barrier")
        g.stamp(0)
        for f in range(8):
            g.ds(f"ds_read_b128 v[{QF+4*f}:{QF+4*f+3}], v{vXq} offset:{(f>>2)*16384 + (f&3)*1024}")
        A(f"v_mov_b32 v{ADW}, v{vWOB}"); A(f"v_add_u32 v{ADK}, 0x10000, v{vWOB}")
        for i in range(1, 4):
            A(f"v_xor_b32 v{ADW+i}, {i<<6}, v{ADW}"); A(f"v_xor_b32 v{ADK+i}, {i<<6}, v{ADK}")
        A(f"s_mov_b32 s{sXS}, s58"); A(f"s_mov_b32 s{sXS+1}, s59"); A(f"s_mov_b32 s{sXS+2}, 0x2000000"); A(f"s_mov_b32 s{sXS+3}, 0x20000")
        sh = 16 if cfg.pbf16 else 17
        A(f"s_lshl_b32 s{sT0}, s{sBR}, 5"); A(f"s_add_u32 s{sT0}, s{sT0}, s{sB}"); A(f"s_lshl_b32 s{sT0}, s{sT0}, 2"); A(f"s_add_u32 s{sT0}, s{sT0}, s{sHG}")
        A(f"s_lshl_b32 s{sT0}, s{sT0}, {sh}"); A(f"s_lshl_b32 s{sT1}, s{sWave}, {sh-2}"); A(f"s_add_u32 s5, s{sT0}, s{sT1}")
        alljobs = []
        for i in range(8):
            for t in range(8):
                def rd(dst, i=i, t=t):
                    sl = ES[t]
                    r = (ADW if sl < 4 else ADK) + (i & 3)
                    return [('d', f"ds_read_b64_tr_b16 v[{dst+2*h}:{dst+2*h+1}], v{r} offset:{(sl&3)*16384 + h*4096 + (i>>2)*256}") for h in range(2)]
                def mf(a, i=i, t=t):
                    d = AOUT + 16 * i
                    return f"v_mfma_f32_32x32x16_bf16 a[{d}:{d+15}], v[{a}:{a+3}], v[{QF+4*t}:{QF+4*t+3}], a[{d}:{d+15}]"
                alljobs.append((rd, mf))
        def store_items(i):
            gs = []
            if cfg.pbf16:
                tb = 32 * (i & 1)
                for ap in range(2):
                    for hh in range(2):
                        k0 = 8 * ap + 4 * hh
                        gs.append([f"v_accvgpr_read_b32 v{tb+k0+k}, a{AOUT+16*i+k0+k}" for k in range(4)] +
                                  [f"v_cvt_pk_bf16_f32 v{tb+16+4*ap+2*hh+k}, v{tb+k0+2*k}, v{tb+k0+2*k+1}" for k in range(2)])
                    gs[-1] += [f"s_add_u32 s{sT0}, s5, {i*2048}",
                               f"buffer_store_dwordx4 v[{tb+16+4*ap}:{tb+19+4*ap}], v{vDWO}, s[{sXS}:{sXS+3}], s{sT0} offen offset:{ap*1024}{cfg.stflags}"]
            else:
                for a in range(4):
                    r = AOUT + 16 * i + 4 * a
                    gs.append([f"s_add_u32 s{sT0}, s5, {i*4096}",
                               f"buffer_store_dwordx4 a[{r}:{r+3}], v{vDWO}, s[{sXS}:{sXS+3}], s{sT0} offen offset:{a*1024}{cfg.stflags}"])
            return gs
        LA = 7
        for j in range(LA): issue_reads(alljobs[j], j % NB)
        for j in range(64):
            b = j % NB
            w = g.cnt - pos[b]
            if w < 500: A(f"s_waitcnt lgkmcnt({min(w, 15)})")
            A(alljobs[j][1](FB + 4 * b))
            n = j + LA
            if n < 64: issue_reads(alljobs[n], n % NB)
            blk, k = j // 8, j % 8
            if blk >= 1 and 3 <= k <= 6:
                for s in store_items(blk - 1)[k - 3]: A(s)
        g.stamp(0)
        A("s_nop 7"); A("s_nop 3")
        for gs in store_items(7):
            for s in gs: A(s)
        A("s_waitcnt vmcnt(0)")
        if cfg.prof:
            g.stamp(0)
            A(f"s_mov_b32 s{sXS+2}, 0x4000000")
            A(f"s_lshl_b32 s{sT0}, s2, 2"); A(f"s_add_u32 s{sT0}, s{sT0}, s{sWave}"); A(f"s_lshl_b32 s{sT0}, s{sT0}, 9"); A(f"s_add_u32 s{sT0}, s{sT0}, 0x2000000")
            A("v_mov_b32 v1, 0")
            for k in range(26): A(f"v_writelane_b32 v1, s{sST+k}, {k}")
            A(f"v_lshrrev_b32 v0, 2, v{vDWO}")
            A(f"buffer_store_dword v1, v0, s[{sXS}:{sXS+3}], s{sT0} offen")
            A("s_waitcnt vmcnt(0)")
        A("L_end:")
        A("s_endpgm")

    def reduce_kernel():
        assert cfg.pbf16
        RT = cfg.rtiles; LB = {1: 3, 2: 2, 4: 1, 8: 0}[RT]
        A(f".globl {RN}"); A(".p2align 8"); A(f".type {RN},@function"); A(f"{RN}:")
        A(f"s_cmp_ge_u32 s2, {512//RT}"); A("s_cbranch_scc1 L_rend")
        A("s_load_dwordx2 s[4:5], s[0:1], 96")
        A("s_load_dwordx2 s[6:7], s[0:1], 80")
        A(f"s_lshr_b32 s16, s2, {LB}"); A(f"s_and_b32 s17, s2, {(1<<LB)-1}"); A(f"s_mul_i32 s17, s17, {RT}")
        A("v_and_b32 v1, 63, v0"); A("v_lshrrev_b32 v2, 6, v0")
        A("v_lshlrev_b32 v3, 4, v1"); A("v_lshl_add_u32 v3, v2, 14, v3")
        A("s_lshl_b32 s18, s16, 18"); A("s_lshl_b32 s19, s17, 11"); A("s_add_u32 s18, s18, s19")
        A("s_waitcnt lgkmcnt(0)")
        A("s_mov_b32 s8, s4"); A("s_mov_b32 s9, s5"); A("s_mov_b32 s10, 0x2000000"); A("s_mov_b32 s11, 0x20000")
        A("s_mov_b32 s12, s6"); A("s_mov_b32 s13, s7"); A("s_mov_b32 s14, 0x400000"); A("s_mov_b32 s15, 0x20000")
        for rt in range(RT):
            for hg in range(4):
                A(f"s_add_u32 s19, s18, {hg*65536 + rt*2048}")
                for ap in range(2):
                    r = 40 + 32 * rt + 8 * hg + 4 * ap
                    A(f"buffer_load_dwordx4 v[{r}:{r+3}], v3, s[8:11], s19 offen offset:{ap*1024}{cfg.rdflags}")
        A("s_and_b32 s20, s16, 31"); A("s_lshr_b32 s21, s16, 5")
        A("s_lshl_b32 s20, s20, 17")
        A("s_lshl_b32 s21, s21, 10"); A("s_add_u32 s20, s20, s21")
        A("s_lshl_b32 s21, s17, 6"); A("s_add_u32 s20, s20, s21")
        A("v_and_b32 v4, 31, v1"); A("v_and_b32 v5, 1, v2"); A("v_lshl_add_u32 v4, v5, 5, v4"); A("v_lshlrev_b32 v4, 11, v4")
        A("v_lshrrev_b32 v5, 1, v2"); A("v_lshl_add_u32 v4, v5, 9, v4")
        A("v_lshrrev_b32 v5, 5, v1"); A("v_lshl_add_u32 v4, v5, 4, v4")
        for rt in range(RT):
            for hg in range(4):
                A(f"s_waitcnt vmcnt({8*(RT-1-rt) + 6 - 2*hg + 2*rt})")
                for k in range(8):
                    r = 40 + 32 * rt + 8 * hg + k
                    if hg == 0:
                        A(f"v_lshlrev_b32 v{8+2*k}, 16, v{r}"); A(f"v_and_b32 v{9+2*k}, 0xffff0000, v{r}")
                    else:
                        A(f"v_lshlrev_b32 v6, 16, v{r}"); A(f"v_and_b32 v7, 0xffff0000, v{r}")
                        A(f"v_add_f32 v{8+2*k}, v{8+2*k}, v6"); A(f"v_add_f32 v{9+2*k}, v{9+2*k}, v7")
            o = 24 + 8 * (rt & 1)
            for j in range(8): A(f"v_cvt_pk_bf16_f32 v{o+j}, v{8+2*j}, v{9+2*j}")
            A(f"buffer_store_dwordx4 v[{o}:{o+3}], v4, s[12:15], s20 offen offset:{rt*64}")
            A(f"buffer_store_dwordx4 v[{o+4}:{o+7}], v4, s[12:15], s20 offen offset:{rt*64+32}")
        A("s_waitcnt vmcnt(0)")
        A("L_rend:")
        A("s_endpgm")
        A('.section .rodata,"a"')
        A(".p2align 6"); A(f".amdhsa_kernel {KN}")
        A("  .amdhsa_next_free_vgpr 512"); A("  .amdhsa_next_free_sgpr 102"); A("  .amdhsa_accum_offset 256")
        A("  .amdhsa_group_segment_fixed_size 0"); A("  .amdhsa_kernarg_size 104"); A("  .amdhsa_user_sgpr_count 2")
        A("  .amdhsa_user_sgpr_kernarg_segment_ptr 1"); A("  .amdhsa_system_sgpr_workgroup_id_x 1"); A(".end_amdhsa_kernel")
        A(".p2align 6"); A(f".amdhsa_kernel {RN}")
        A(f"  .amdhsa_next_free_vgpr {40+32*cfg.rtiles}"); A("  .amdhsa_next_free_sgpr 32"); A(f"  .amdhsa_accum_offset {40+32*cfg.rtiles}")
        A("  .amdhsa_group_segment_fixed_size 0"); A("  .amdhsa_kernarg_size 104"); A("  .amdhsa_user_sgpr_count 2")
        A("  .amdhsa_user_sgpr_kernarg_segment_ptr 1"); A("  .amdhsa_system_sgpr_workgroup_id_x 1"); A(".end_amdhsa_kernel")

    g.emit = False; g.q = []
    prologue(); stage_P()
    for h in range(8): head(h)
    back = dict(pos); backcnt = g.cnt
    tail()
    g.emit = True; g.q = []; g.cnt = 0; g.lab = 0
    prologue(); stage_P()
    for b in range(NB): pos[b] = g.cnt - (backcnt - back[b])
    head(0); tail(); reduce_kernel()
    if "-v" in sys.argv: print(g.req)
    return "\n".join(g.L) + "\n"

if __name__ == "__main__":
    out = sys.argv[1]
    for a in sys.argv[2:]:
        if "=" in a:
            k, v = a.split("=", 1)
            setattr(Cfg, k, eval(v))
    open(out, "w").write(gen())
```

```python
import sys, struct, math

KN = "concat_heads__mha_block_cached__mha_block_cached__near_ridge_kernel"
RN = "mha_reduce_kernel"

class Cfg:
    NKV = 5
    NW = 3
    warm = True
    wmode = 'bulkP'
    prof = False
    prof_head = 3
    dma_pos = [0, 2, 4, 6, 8, 10, 12, 14, 15]
    stflags = ''
    wplan = [(-1, 0, 14), (7, 14, 18)]
    rdflags = ''
    pbf16 = True
    WARMALL = ['o0', 'q2', 'o1', 'q3', 'o2', 'q4', 'o3', 'q5', 'o4', 'q6', 'o5', 'q7', 'o6', 'o7']
    pro = ['q0', 'x0', 'w0', 'x1', 'w1', 'q1', 'x2', 'w2', 'x3', 'w3', 'x4', 'w4', 'x5', 'x6', 'x7', 'k0'] + WARMALL
    pplan = [[], ['w5'], ['w6', 'k1'], ['w7'], ['k2'], [], ['w8', 'k3'], ['w9', 'p4']]
    loopwarm = False
    wo7 = True
    kvfirst = False
    rtiles = 1
    wgran = 2
    wl = ''
    xl = ''
    wmf = ''

def f32bits(x):
    return struct.unpack("<I", struct.pack("<f", x))[0]

NB = 8
QF = 128; QA = 160
ACC = [32, 48, 160, 176]
def Sreg(t): return 16 * t
def Preg(t): return 8 * t if t < 4 else 64 + 8 * (t - 4)
FB = 192; ADK = 224; ADW = 228
vKB, vVB, vWQB, vWOB = 232, 233, 234, 235
vDK, vDV, vDWO, vDWQ, vDt = 236, 237, 238, 239, 240
vXown, vXq, vDummy = 241, 242, 243
OFr = 244
vMx, vMc, vL, vAl, vS0, vS1, vS2, vS3 = 248, 249, 250, 251, 252, 253, 254, 255
AOUT = 0; AX = 128

sK, sV, sWQ, sWO, sXS = 8, 12, 16, 20, 24
sRole, sH, sKVoff, sWoOff, sWqOff = 28, 29, 30, 31, 32
sPkv, sPw, sKVc, sWc, sC, sT0, sT1, sWave, sHW = 33, 34, 60, 61, 62, 63, 64, 65, 66
sB, sHG, sBR, sW4 = 67, 68, 69, 71
sWarmQ, sWarmO = 74, 75
sKVn, sTk, sTw = 35, 7, 3
sST = 76

class Gen:
    def __init__(self, cfg):
        self.cfg = cfg; self.req = {}; self.L = []; self.emit = False; self.q = []; self.lab = 0; self.cnt = 0
        self.nst = 0
    def A(self, s):
        if self.emit: self.L.append(s)
    def newlab(self, p):
        self.lab += 1
        return f"L_{p}_{self.lab}"
    def ds(self, s):
        self.A(s); self.cnt += 1
    def vm(self, s, tag):
        self.A(s); self.q.append(tag)
    def vwait(self, site, tags):
        idx = max([i for i, t in enumerate(self.q) if t in tags], default=-1)
        c = len(self.q) - 1 - idx
        if not self.emit: self.req[site] = min(self.req.get(site, 63), c)
        else: self.A(f"s_waitcnt vmcnt({min(self.req[site], 63)})")
    def stamp(self, inloop):
        if not self.cfg.prof or not self.emit: return
        if bool(inloop) != (self.cfg.prof == 'loop'): return
        A = self.A
        k = self.nst; self.nst += 1
        assert k < 26
        if inloop:
            l = self.newlab("st")
            A(f"s_cmp_lg_u32 s{sH}, {self.cfg.prof_head}"); A(f"s_cbranch_scc1 {l}")
        A("s_memtime s[72:73]"); A("s_waitcnt lgkmcnt(0)")
        A(f"s_mov_b32 s{sST+k}, s72")
        if inloop: A(f"{l}:")

def gen(cfg=Cfg):
    g = Gen(cfg)
    NKV, NW = cfg.NKV, cfg.NW
    DKV, DW = NKV - 1, NW - 1
    assert DKV >= DW + 2 and NW == 3 and NKV == 5
    KVBASE = 0; WBASE = NKV * 16384; XBASE = WBASE + NW * 16384; LDS = XBASE + 32768
    assert LDS <= 163840 and XBASE % 32768 == 0
    XST = KVBASE + 16384
    PSLOT = [WBASE, WBASE + 16384, WBASE + 32768, XBASE, XBASE + 16384, WBASE, WBASE + 16384, WBASE + 32768]
    A = g.A

    def adv(reg, base, n):
        return [f"s_add_u32 s{reg}, s{reg}, 16384", f"s_cmp_ge_u32 s{reg}, {base + n*16384}", f"s_cselect_b32 s{reg}, {base}, s{reg}"]
    def advp(reg, base, n):
        return [f"s_add_u32 s{reg}, s{reg}, 16384", f"s_cmp_ge_u32 s{reg}, {base + n*16384}", f"s_cselect_b32 s{sT1}, {n*16384}, 0", f"s_sub_u32 s{reg}, s{reg}, s{sT1}"]
    def vo_x(base, i):
        if i == 0: return ["s_nop 0"], base
        return [f"v_xor_b32 v{vDt}, {i<<6}, v{base}"], vDt
    def dma_kv(m, tag, adv_ptr=False):
        tt, carry = m & 15, m >> 4
        srd = sK if tt < 8 else sV
        off = (tt & 7) * 16384 + carry * 131072
        gs = []
        for i in range(4):
            pre = []
            if i == 0: pre = [f"s_add_u32 m0, s{sPkv}, s{sW4}", f"s_add_u32 s{sTk}, s{sKVoff}, {off}"]
            vo = vDV
            if tt < 8:
                vo = vDK
                if i: pre += [f"v_xor_b32 v{vDt}, {i<<6}, v{vDK}"]; vo = vDt
            ld = f"buffer_load_dwordx4 v{vo}, s[{srd}:{srd+3}], s{sTk} offen offset:{i*1024} nt lds"
            post = []
            if i == 3: post = adv(sPkv, KVBASE, NKV) if adv_ptr else [f"s_mov_b32 s{sPkv}, s{sKVn}"]
            gs.append((pre, ld, post, tag))
        return gs
    def dma_wo(tile, tag, slot=None, adv_ptr=False):
        gs = []
        for i in range(4):
            pre = []
            if i == 0:
                m0 = f"s_add_u32 m0, s{sPw}, s{sW4}" if slot is None else f"s_add_u32 m0, s{sW4}, {slot}"
                pre = [m0, f"s_add_u32 s{sTw}, s{sWoOff}, {tile*16384}"]
            vo = vDWO
            if i: pre += [f"v_xor_b32 v{vDt}, {i<<6}, v{vDWO}"]; vo = vDt
            ld = f"buffer_load_dwordx4 v{vo}, s[{sWO}:{sWO+3}], s{sTw} offen offset:{i*1024}{cfg.wl} lds"
            gs.append((pre, ld, adv(sPw, WBASE, NW) if (i == 3 and adv_ptr) else [], tag))
        return gs
    def dma_wq(tile, dh, tag, slot=None, adv_ptr=False):
        gs = []
        for i in range(4):
            pre = []
            if i == 0:
                pre = [f"s_add_u32 m0, s{sPw}, s{sW4}" if slot is None else f"s_add_u32 m0, s{sW4}, {slot}"]
            pre += [f"s_add_u32 s{sTw}, s{sWqOff}, {tile*524288 + i*(32768-1024) + dh*256}"]
            ld = f"buffer_load_dwordx4 v{vDWQ}, s[{sWQ}:{sWQ+3}], s{sTw} offen offset:{i*1024}{cfg.wl} lds"
            gs.append((pre, ld, adv(sPw, WBASE, NW) if (i == 3 and adv_ptr) else [], tag))
        return gs
    def xblk(t):
        return [([f"s_add_u32 s{sT0}, s4, {j*8192 + t*128}", f"s_add_u32 m0, s5, {XST + t*8192 + j*1024}", "s_nop 0"],
                 f"buffer_load_dwordx4 v{14+j}, s[{sXS}:{sXS+3}], s{sT0} offen{cfg.xl} lds", [], ("x", t)) for j in range(2)]
    def plan_items(items):
        dm = []
        for it in items:
            k, n = it[0], int(it[1:])
            if k == 'x': dm += xblk(n)
            elif k == 'w': dm += dma_wq(n, 0, ("W", n), PSLOT[n]) if n < 8 else dma_wq(n - 8, 1, ("W", n), adv_ptr=True)
            elif k == 'k': dm += dma_kv(n, ("KV", n), adv_ptr=True)
            elif k == 'p': dm += [([], f"buffer_load_dword v{vDummy}, v{vDWO}, s[{sWO}:{sWO+3}], s6 offen", [], "pad")] * n
            elif k == 'q': dm += [warm_wq(n)]
            elif k == 'o': dm += [warm_wo(n + 1)]
        return dm
    def warm_wq(dh):
        return ([f"s_add_u32 s{sT0}, s{sWqOff}, s{sWarmQ}"] + ([f"s_add_u32 s{sT0}, s{sT0}, {dh*256}"] if dh else []),
                f"buffer_load_dword v{vDummy}, v{vDWQ}, s[{sWQ}:{sWQ+3}], s{sT0} offen{cfg.wmf}", [], "warm")
    def warm_wo(dh):
        return ([f"s_add_u32 s{sT0}, s{sWoOff}, s{sWarmO}", f"s_add_u32 s{sT0}, s{sT0}, {dh*131072}"],
                f"buffer_load_dword v{vDummy}, v{vDWO}, s[{sWO}:{sWO+3}], s{sT0} offen{cfg.wmf}", [], "warm")
    def emit_dma(gr):
        pre, ld, post, tag = gr
        for s in pre: A(s)
        g.vm(ld, tag)
        for s in post: A(s)
    def dma_w_loop(h, tg):
        m = tg + DW
        tag = ("W", 8 + 16 * h + m)
        if m < 8: return dma_wq(m, 0, tag)
        if m < 16: return dma_wo(m - 8, tag)
        return dma_wq(m - 16, 1, tag)
    def dma_kv_loop(h, tg):
        return dma_kv(tg + DKV, ("KV", 16 * h + tg + DKV))

    def jobs_qk(t):
        js = []
        for s in range(8):
            def rd(dst, s=s):
                if s == 0: return [('d', f"ds_read_b128 v[{dst}:{dst+3}], v{ADK}")]
                tmp = ADK + 1 + (s & 1)
                return [('v', f"v_xor_b32 v{tmp}, {s<<5}, v{ADK}"), ('d', f"ds_read_b128 v[{dst}:{dst+3}], v{tmp}")]
            def mf(a, s=s, t=t):
                d = Sreg(t)
                c = "0" if s == 0 else f"v[{d}:{d+15}]"
                return f"v_mfma_f32_32x32x16_bf16 v[{d}:{d+15}], v[{a}:{a+3}], v[{QF+4*s}:{QF+4*s+3}], {c}"
            js.append((rd, mf))
        return js
    def jobs_op(t, breg=OFr):
        js = []
        for i in range(8):
            def rd(dst, i=i):
                return [('d', f"ds_read_b64_tr_b16 v[{dst+2*h}:{dst+2*h+1}], v{ADW+(i&3)} offset:{h*4096 + (i>>2)*256}") for h in range(2)]
            def mf(a, i=i):
                d = AOUT + 16 * i
                return f"v_mfma_f32_32x32x16_bf16 a[{d}:{d+15}], v[{a}:{a+3}], v[{breg}:{breg+3}], a[{d}:{d+15}]"
            js.append((rd, mf))
        return js
    def jobs_pv(t):
        js = []
        for (u, i) in [(0, 0), (0, 1), (1, 0), (1, 1), (0, 2), (0, 3), (1, 2), (1, 3)]:
            def rd(dst, i=i, u=u):
                return [('d', f"ds_read_b64_tr_b16 v[{dst+2*h}:{dst+2*h+1}], v{ADK+i} offset:{u*4096 + h*2048}") for h in range(2)]
            def mf(a, i=i, u=u, t=t):
                d = ACC[i]
                c = "0" if (t == 0 and u == 0) else f"v[{d}:{d+15}]"
                p = Preg(t) + 4 * u
                return f"v_mfma_f32_32x32x16_bf16 v[{d}:{d+15}], v[{a}:{a+3}], v[{p}:{p+3}], {c}"
            js.append((rd, mf))
        return js
    def jobs_qp(t):
        js = []
        for s in range(4):
            for i in range(2):
                def rd(dst, i=i, s=s):
                    return [('d', f"ds_read_b64_tr_b16 v[{dst+2*h}:{dst+2*h+1}], v{ADW+i} offset:{s*4096 + h*1024}") for h in range(2)]
                def mf(a, i=i, s=s, t=t):
                    d = QA + 16 * i
                    c = "0" if (t == 0 and s == 0) else f"v[{d}:{d+15}]"
                    x = AX + 4 * (4 * t + s)
                    return f"v_mfma_f32_32x32x16_bf16 v[{d}:{d+15}], v[{a}:{a+3}], a[{x}:{x+3}], {c}"
                js.append((rd, mf))
        return js
    def addr_k(save=True): return ([f"s_mov_b32 s{sKVn}, s{sKVc}"] if save else []) + adv(sKVc, KVBASE, NKV) + [f"v_add_u32 v{ADK}, s{sKVc}, v{vKB}"]
    def addr_v(): return [f"s_mov_b32 s{sKVn}, s{sKVc}"] + adv(sKVc, KVBASE, NKV) + [f"v_add_u32 v{ADK}, s{sKVc}, v{vVB}"] + [f"v_xor_b32 v{ADK+i}, {i<<6}, v{ADK}" for i in range(1, 4)]
    def addr_wo(): return [f"s_mov_b32 s{sPw}, s{sWc}"] + adv(sWc, WBASE, NW) + [f"v_add_u32 v{ADW}, s{sWc}, v{vWOB}"] + [f"v_xor_b32 v{ADW+i}, {i<<6}, v{ADW}" for i in range(1, 4)]
    def addr_wq(save=True): return ([f"s_mov_b32 s{sPw}, s{sWc}"] if save else []) + adv(sWc, WBASE, NW) + [f"v_add_u32 v{ADW}, s{sWc}, v{vWQB}", f"v_xor_b32 v{ADW+1}, 64, v{ADW}"]

    pos = {}
    def put(kind, text):
        if kind == 'd': g.ds(text)
        else: A(text)
    def issue_reads(job, b):
        for k, s in job[0](FB + 4 * b): put(k, s)
        pos[b] = g.cnt
    def cost(it):
        return 2 if it[2].startswith(("v_exp", "v_rcp")) else 1

    def full_step(kvjobs, wjobs, nxt_kvjobs, nxt_kv_addr, nxt_w_addr, dmas, extras=(), head=(), fixed=None, drained=False):
        jobs = kvjobs + wjobs
        if drained:
            for b in range(NB): pos[b] = -1000
        for k, s in head: put(k, s)
        dq = list(dmas); ex = list(extras); fixed = fixed or {}
        for j in range(16):
            b = j % NB
            if j % cfg.wgran == 0:
                w = g.cnt - pos[(j + cfg.wgran - 1) % NB]
                if w < 500: A(f"s_waitcnt lgkmcnt({min(w, 15)})")
            A(jobs[j][1](FB + 4 * b))
            if j < 8: issue_reads(jobs[j + 8], b)
            if j == 7:
                for s in nxt_kv_addr: A(s)
                for s in nxt_w_addr: A(s)
            if j >= 8 and nxt_kvjobs: issue_reads(nxt_kvjobs[j - 8], b)
            for k, s in fixed.get(j, []): put(k, s)
            if j in cfg.dma_pos and dq: emit_dma(dq.pop(0))
            rem = sum(cost(e) for e in ex)
            quota = math.ceil(rem / (16 - j))
            used = 0
            while ex and ex[0][0] <= j and used < quota:
                e = ex.pop(0); put(e[1], e[2]); used += cost(e)
        for d in dq: emit_dma(d)
        for e in ex: put(e[1], e[2])

    def half_step(wjobs, dmas):
        for j in range(8): issue_reads(wjobs[j], j)
        dq = list(dmas)
        for j in range(8):
            w = g.cnt - pos[j]
            if w < 500: A(f"s_waitcnt lgkmcnt({min(w, 15)})")
            A(wjobs[j][1](FB + 4 * j))
            if dq and (j % 2 == 0 or len(dq) > 8 - j): emit_dma(dq.pop(0))
            if len(dq) > 2 * (8 - j): emit_dma(dq.pop(0))
        for d in dq: emit_dma(d)

    def x_max(t, first=False, e=0):
        b = Sreg(t); out = []
        if first:
            out.append((e, 'v', f"v_max_f32 v{vMx}, v{b}, v{b+1}")); k0 = 2
        else: k0 = 0
        for k in range(k0, 16, 2): out.append((e, 'v', f"v_max3_f32 v{vMx}, v{vMx}, v{b+k}, v{b+k+1}"))
        return out
    def x_crossmax(e=0):
        return [(e, 'v', f"v_mov_b32 v{vAl}, v{vMx}"), (e, 'v', "s_nop 1"), (e, 'v', f"v_permlane32_swap_b32 v{vMx}, v{vAl}"),
                (e, 'v', f"v_max_f32 v{vMx}, v{vMx}, v{vAl}")]
    def x_exp(t, e=0):
        b = Sreg(t); p = Preg(t); out = []
        for j in range(9):
            if j < 8:
                out += [(e, 'v', f"v_fma_f32 v{b+2*j}, v{b+2*j}, s{sC}, -v{vMc}"), (e, 'v', f"v_fma_f32 v{b+2*j+1}, v{b+2*j+1}, s{sC}, -v{vMc}"),
                        (e, 'v', f"v_exp_f32 v{b+2*j}, v{b+2*j}"), (e, 'v', f"v_exp_f32 v{b+2*j+1}, v{b+2*j+1}")]
            else:
                out += [(e, 'v', "s_nop 0")]
            if j > 0:
                k = j - 1
                out += [(e, 'v', f"v_add_f32 v{vL}, v{vL}, v{b+2*k}"), (e, 'v', f"v_add_f32 v{vL}, v{vL}, v{b+2*k+1}"),
                        (e, 'v', f"v_cvt_pk_bf16_f32 v{p+k}, v{b+2*k}, v{b+2*k+1}")]
        return out
    def x_factors(e=0):
        return [(e, 'v', s) for s in [
            f"v_max_f32 v{vAl}, v{vS0}, v{vS2}", f"v_sub_f32 v{vS0}, v{vS0}, v{vAl}", f"v_sub_f32 v{vS2}, v{vS2}, v{vAl}",
            f"v_exp_f32 v{vS0}, v{vS0}", f"v_exp_f32 v{vS2}, v{vS2}", "s_nop 0",
            f"v_mul_f32 v{vS1}, v{vS1}, v{vS0}", f"v_fma_f32 v{vS1}, v{vS3}, v{vS2}, v{vS1}", f"v_rcp_f32 v{vS1}, v{vS1}", "s_nop 0",
            f"v_mul_f32 v{vS0}, v{vS0}, v{vS1}", f"v_mul_f32 v{vS1}, v{vS2}, v{vS1}"]]
    def x_merge(i, e=0):
        a = ACC[i]; r = 64 + 16 * i; p = 96 + 8 * i; out = []
        for j in range(8):
            for k in (2 * j, 2 * j + 1):
                out += [(e, 'v', f"v_mul_f32 v{a+k}, v{a+k}, v{vS0}"), (e, 'v', f"v_fma_f32 v{a+k}, v{r+k}, v{vS1}, v{a+k}")]
            out.append((e, 'v', f"v_cvt_pk_bf16_f32 v{p+j}, v{a+2*j}, v{a+2*j+1}"))
            if j in (3, 7):
                f = 2 * i + (j >> 2)
                out.append((e, 'd', f"ds_write_b128 v{vXown}, v[{96+4*f}:{99+4*f}] offset:{f*1024}"))
        return out
    def h_partial_write():
        out = [('v', f"v_xor_b32 v{vDt}, 0x4000, v{vXown}")]
        for k in range(8):
            r = ACC[2 + (k >> 2)] + 4 * (k & 3)
            out.append(('d', f"ds_write_b128 v{vDt}, v[{r}:{r+3}] offset:{k*1024}"))
        return out
    def h_partial_read():
        return [('d', f"ds_read_b128 v[{64+4*k}:{67+4*k}], v{vXown} offset:{k*1024}") for k in range(8)]
    def qpack(f):
        return [('v', f"v_cvt_pk_bf16_f32 v{QF+4*f+j}, v{QA+8*f+2*j}, v{QA+8*f+2*j+1}") for j in range(4)]
    def qwrite():
        return [('d', f"ds_write_b128 v{vXown}, v[{QF+4*f}:{QF+4*f+3}] offset:{4096 + f*1024}") for f in range(4)]
    def qread():
        return [('d', f"ds_read_b128 v[{QF+4*f}:{QF+4*f+3}], v{vXq} offset:{(f>>2)*16384 + (f&3)*1024 + 4096}") for f in range(8)]

    def prologue():
        A(f"; @launch kernel={KN} grid=(256,1,1) block=(256,1,1) lds={LDS}")
        A(f"; @launch kernel={RN} grid=({512//cfg.rtiles},1,1) block=(256,1,1) lds=0")
        A('.amdgcn_target "amdgcn-amd-amdhsa--gfx950"')
        A(".text")
        A(f".globl {KN}"); A(".p2align 8"); A(f".type {KN},@function"); A(f"{KN}:")
        A("s_cmp_ge_u32 s2, 256"); A("s_cbranch_scc1 L_end")
        A("s_load_dwordx8 s[36:43], s[0:1], 0")
        A("s_load_dwordx2 s[44:45], s[0:1], 32")
        A("s_load_dwordx8 s[48:55], s[0:1], 40")
        A("s_load_dwordx2 s[56:57], s[0:1], 72")
        A("s_load_dwordx2 s[58:59], s[0:1], 96")
        A(f"s_lshr_b32 s{sBR}, s2, 2"); A(f"s_and_b32 s{sBR}, s{sBR}, 1")
        A(f"s_and_b32 s{sHG}, s2, 3")
        A(f"s_lshr_b32 s{sB}, s2, 3")
        A("v_lshrrev_b32 v1, 6, v0")
        A("v_and_b32 v2, 63, v0")
        A(f"v_readfirstlane_b32 s{sWave}, v1")
        A("v_lshrrev_b32 v10, 4, v2"); A("v_and_b32 v11, 15, v2")
        A("v_lshlrev_b32 v12, 2, v10"); A("v_xor_b32 v12, v12, v11"); A("v_lshlrev_b32 v12, 4, v12")
        A(f"v_lshl_add_u32 v{vDV}, v10, 8, v12")
        A(f"v_lshl_add_u32 v{vDWQ}, v10, 13, v12")
        A("v_xor_b32 v13, v10, v11"); A("v_lshlrev_b32 v13, 4, v13"); A(f"v_lshl_add_u32 v{vDK}, v10, 8, v13")
        A(f"v_lshlrev_b32 v{vDWO}, 4, v2")
        A("s_waitcnt lgkmcnt(0)")
        A(f"s_cmp_eq_u32 s{sBR}, 0")
        for i in range(10):
            A(f"s_cselect_b32 s{36+i}, s{36+i}, s{48+i}")
        A(f"s_lshl_b32 s{sT0}, s{sB}, 22"); A(f"s_lshl_b32 s{sT1}, s{sHG}, 20"); A(f"s_add_u32 s{sT0}, s{sT0}, s{sT1}")
        A(f"s_add_u32 s{sK}, s38, s{sT0}"); A(f"s_addc_u32 s{sK+1}, s39, 0"); A(f"s_mov_b32 s{sK+2}, 0x100000"); A(f"s_mov_b32 s{sK+3}, 0x20000")
        A(f"s_add_u32 s{sV}, s40, s{sT0}"); A(f"s_addc_u32 s{sV+1}, s41, 0"); A(f"s_mov_b32 s{sV+2}, 0x100000"); A(f"s_mov_b32 s{sV+3}, 0x20000")
        A(f"s_lshl_b32 s{sT0}, s{sHG}, 11")
        A(f"s_add_u32 s{sWQ}, s42, s{sT0}"); A(f"s_addc_u32 s{sWQ+1}, s43, 0"); A(f"s_sub_u32 s{sWQ+2}, 0x400000, s{sT0}"); A(f"s_mov_b32 s{sWQ+3}, 0x20000")
        A(f"s_add_u32 s{sWO}, s44, s{sT1}"); A(f"s_addc_u32 s{sWO+1}, s45, 0"); A(f"s_mov_b32 s{sWO+2}, 0x100000"); A(f"s_mov_b32 s{sWO+3}, 0x20000")
        A(f"s_sub_u32 s46, s{sWO}, 0x20000"); A(f"s_subb_u32 s47, s{sWO+1}, 0")
        A(f"s_lshl_b32 s{sT0}, s{sB}, 16")
        A(f"s_add_u32 s{sXS}, s36, s{sT0}"); A(f"s_addc_u32 s{sXS+1}, s37, 0"); A(f"s_mov_b32 s{sXS+2}, 0x10000"); A(f"s_mov_b32 s{sXS+3}, 0x20000")
        A(f"s_lshr_b32 s{sRole}, s{sWave}, 1")
        A(f"s_and_b32 s{sHW}, s{sWave}, 1")
        A(f"s_lshl_b32 s{sW4}, s{sWave}, 12")
        A(f"s_mov_b32 s{sC}, 0x{f32bits(128 ** -0.5 * 1.4426950408889634):08x}")
        A(f"s_mov_b32 s{sPkv}, {KVBASE}"); A(f"s_mov_b32 s{sPw}, {WBASE}")
        A(f"s_mov_b32 s{sKVoff}, s{sW4}")
        A(f"s_sub_u32 s{sWoOff}, s{sW4}, 131072")
        A(f"s_lshl_b32 s{sWqOff}, s{sWave}, 17")
        A(f"s_mov_b32 s{sKVc}, {KVBASE + (NKV-1)*16384}"); A(f"s_mov_b32 s{sWc}, {WBASE + (NW-1)*16384}")
        A(f"s_mov_b32 s{sH}, 0")
        A(f"s_lshl_b32 s{sWarmQ}, s{sB}, 17"); A(f"s_lshl_b32 s{sT0}, s{sWave}, 15"); A(f"s_add_u32 s{sWarmQ}, s{sWarmQ}, s{sT0}")
        A(f"s_sub_u32 s{sWarmQ}, s{sWarmQ}, s{sWqOff}")
        A(f"s_lshl_b32 s{sWarmO}, s{sB}, 12"); A(f"s_lshl_b32 s{sT0}, s{sWave}, 10"); A(f"s_add_u32 s{sWarmO}, s{sWarmO}, s{sT0}")
        A(f"s_sub_u32 s{sWarmO}, s{sWarmO}, s{sW4}")
        g.stamp(0)
        A("v_lshrrev_b32 v13, 3, v2"); A("v_and_b32 v14, 7, v2"); A("v_lshrrev_b32 v15, 1, v13"); A("v_xor_b32 v14, v14, v15")
        A("v_lshlrev_b32 v14, 4, v14"); A("v_lshl_add_u32 v14, v13, 10, v14"); A("v_xor_b32 v15, 64, v14")
        A(f"s_lshl_b32 s4, s{sWave}, 14"); A(f"s_lshl_b32 s5, s{sWave}, 11")
        A("s_mov_b32 s6, 0x80000000")
        for d in plan_items(cfg.pro): emit_dma(d)
        g.stamp(0)
        A("v_lshrrev_b32 v3, 5, v2"); A("v_and_b32 v4, 31, v2")
        A("v_bfe_u32 v5, v2, 4, 1"); A("v_bfe_u32 v6, v2, 2, 2"); A("v_and_b32 v7, 3, v2")
        A("v_and_b32 v8, 1, v7"); A("v_lshlrev_b32 v8, 1, v8"); A("v_lshrrev_b32 v9, 1, v7"); A("v_or_b32 v8, v8, v9")
        A("v_lshlrev_b32 v8, 3, v8"); A("v_lshl_add_u32 v8, v5, 5, v8")
        A(f"v_mov_b32 v9, s{sRole}")
        A("v_lshlrev_b32 v10, 5, v9"); A("v_lshl_add_u32 v10, v3, 2, v10"); A("v_add_u32 v10, v10, v6")
        A("v_lshlrev_b32 v11, 1, v9"); A("v_xor_b32 v11, v11, v6")
        A("v_lshlrev_b32 v10, 8, v10"); A("v_lshl_add_u32 v10, v11, 6, v10"); A(f"v_add_u32 v{vVB}, v10, v8")
        A("v_lshl_add_u32 v12, v3, 3, v6")
        A("v_lshlrev_b32 v10, 8, v12"); A("v_lshl_add_u32 v10, v11, 6, v10"); A(f"v_add_u32 v{vWQB}, v10, v8")
        A("v_lshlrev_b32 v10, 10, v12"); A("v_lshl_add_u32 v10, v9, 9, v10"); A("v_lshl_add_u32 v10, v6, 6, v10"); A(f"v_add_u32 v{vWOB}, v10, v8")
        A("v_lshl_add_u32 v10, v9, 5, v4"); A("v_and_b32 v11, 15, v4"); A("v_xor_b32 v11, v11, v3")
        A("v_lshlrev_b32 v10, 8, v10"); A(f"v_lshl_add_u32 v{vKB}, v11, 4, v10")
        A(f"s_lshl_b32 s{sT0}, s{sWave}, 13"); A(f"s_add_u32 s{sT0}, s{sT0}, {XBASE}")
        A(f"v_add_u32 v{vXown}, s{sT0}, v{vDWO}")
        A(f"s_lshl_b32 s{sT1}, s{sHW}, 13"); A(f"s_add_u32 s{sT1}, s{sT1}, {XBASE}")
        A(f"v_add_u32 v{vXq}, s{sT1}, v{vDWO}")
        A(f"s_lshl_b32 s{sT0}, s{sHW}, 12"); A(f"s_add_u32 s{sT0}, s{sT0}, {XST}")
        A("v_bfe_u32 v11, v4, 1, 3"); A("v_xor_b32 v11, v11, v3"); A("v_lshlrev_b32 v11, 4, v11")
        A("v_lshl_add_u32 v11, v4, 7, v11"); A(f"v_add_u32 v16, s{sT0}, v11")
        for s in range(1, 4): A(f"v_xor_b32 v{16+s}, {s<<5}, v16")
        for i in range(128): A(f"v_accvgpr_write_b32 a{AOUT+i}, 0")
        for i in range(32): A(f"v_mov_b32 v{32+i}, 0")
        A(f"v_mov_b32 v{vS0}, 0"); A(f"v_mov_b32 v{vS1}, 1.0"); A(f"v_mov_b32 v{vS2}, 0"); A(f"v_mov_b32 v{vS3}, 1.0")
        g.stamp(0)

    def warm_list():
        pad = ([], f"buffer_load_dword v{vDummy}, v{vDWO}, s[{sWO}:{sWO+3}], s6 offen", [], "pad")
        return [warm_wo(1), warm_wq(2), warm_wo(2), warm_wq(3), warm_wo(3), warm_wq(4), warm_wo(4), warm_wq(5), warm_wo(5), warm_wq(6),
              warm_wo(6), warm_wq(7), warm_wo(7), warm_wo(8), pad, pad, pad, pad]
    def stage_P():
        wl = warm_list()
        wl_old = [warm_wo(1), warm_wq(2), warm_wo(2), warm_wq(3), warm_wo(3), warm_wq(4), warm_wo(4), warm_wq(5), warm_wo(5), warm_wq(6),
              warm_wo(6), warm_wq(7), warm_wo(7), warm_wo(8)]
        for t in range(8):
            A(f"v_add_u32 v{ADW}, {PSLOT[t]}, v{vWQB}"); A(f"v_xor_b32 v{ADW+1}, 64, v{ADW}")
            g.vwait(("P", t), {("W", t), ("x", t)})
            A("s_barrier")
            g.stamp(0)
            for s in range(4):
                g.ds(f"ds_read_b128 a[{AX+16*t+4*s}:{AX+16*t+4*s+3}], v{16+s} offset:{t*8192}")
            dm = plan_items(cfg.pplan[t])
            half_step(jobs_qp(t), dm)
        A(f"s_add_u32 s{sWqOff}, s{sWqOff}, 256")
        for s in addr_k(False): A(s)
        for s in addr_wq(False): A(s)
        A("s_nop 7")
        for f in range(4):
            for k, s in qpack(f): put(k, s)
        for k, s in qwrite(): put(k, s)
        for i in range(32): A(f"v_mov_b32 v{QA+i}, 0")
        A("s_waitcnt lgkmcnt(0)")
        g.vwait(("PP",), {("KV", 0)})
        A("s_barrier")
        for k, s in qread(): put(k, s)
        js = jobs_qk(0)
        for j in range(8): issue_reads(js[j], j)
        A("s_waitcnt lgkmcnt(0)")
        g.stamp(0)
        A("L_head:")

    loopwarm = [warm_wq(1), warm_wo(1), warm_wq(2), warm_wo(2), warm_wq(3), warm_wo(3), warm_wq(4), warm_wo(4), warm_wq(5), warm_wo(5),
                warm_wq(6), warm_wo(6), warm_wo(7), warm_wo(8)]
    def head(h):
        for t in range(8):
            g.vwait(("A", t), {("W", 8 + 16 * h + t), ("KV", 16 * h + t + 1)})
            A("s_barrier")
            g.stamp(1)
            dm = dma_w_loop(h, t) + dma_kv_loop(h, t)
            if cfg.kvfirst: dm = dm[4:] + dm[:4]
            if cfg.loopwarm: dm += [loopwarm[t]]
            hd = []; ex = []
            if t == 0: hd = h_partial_write(); ex = x_factors()
            if t == 1: hd = h_partial_read(); ex = x_max(0, first=True) + x_merge(0, e=8)
            if t == 2: ex = x_merge(1) + x_max(1)
            if t == 3: ex = x_max(2)
            if t == 4:
                ex = x_max(3) + x_crossmax() + [(0, 'v', f"v_mul_f32 v{vMc}, s{sC}, v{vMx}"), (0, 'v', f"v_mov_b32 v{vL}, 0")] + x_exp(0)
            if t >= 5: ex = x_exp(t - 4) + x_max(t - 1)
            if t < 7: full_step(jobs_qk(t), jobs_qp(t), jobs_qk(t + 1), addr_k(), addr_wq(), dm, ex, hd)
            else: full_step(jobs_qk(t), jobs_qp(t), jobs_pv(0), addr_v(), addr_wo(), dm, ex, hd)
        for t in range(8):
            if t == 0 and cfg.wo7:
                A(f"s_cmp_lg_u32 s{sH}, 7"); A("s_cbranch_scc1 L_nosw")
                A(f"s_mov_b32 s{sK}, s46"); A(f"s_mov_b32 s{sK+1}, s47"); A(f"s_mov_b32 s{sK+2}, 0x120000")
                A(f"v_mov_b32 v{vDK}, v{vDWO}")
                A("L_nosw:")
            g.vwait(("B", t), {("W", 16 + 16 * h + t), ("KV", 16 * h + 8 + t + 1)})
            A("s_barrier")
            g.stamp(1)
            dm = dma_w_loop(h, 8 + t) + dma_kv_loop(h, 8 + t)
            if cfg.kvfirst: dm = dm[4:] + dm[:4]
            if cfg.loopwarm and 8 + t < len(loopwarm): dm += [loopwarm[8 + t]]
            hd = [('d', f"ds_read_b128 v[{OFr}:{OFr+3}], v{vXq} offset:{(t>>2)*16384 + (t&3)*1024}")]
            ex = []; fx = None
            if t == 0:
                fx = {0: qpack(0), 1: qpack(1), 2: qpack(2), 3: qpack(3), 4: qwrite()}
                ex = x_max(7, e=5) + x_crossmax(5) + [(5, 'v', s) for s in [
                    f"v_mul_f32 v{vS2}, s{sC}, v{vMx}", f"v_sub_f32 v{vAl}, v{vMc}, v{vS2}", f"v_exp_f32 v{vAl}, v{vAl}",
                    f"v_mov_b32 v{vMc}, v{vS2}", f"v_mul_f32 v{vL}, v{vL}, v{vAl}"]]
            if t == 1: hd += qread(); ex = x_exp(4)
            if t == 2: ex = x_exp(5)
            if t == 3:
                for i, e in [(0, 5), (1, 6), (2, 9), (3, 10)]:
                    ex += [(e, 'v', f"v_mul_f32 v{ACC[i]+k}, v{ACC[i]+k}, v{vAl}") for k in range(16)]
            if t == 4: ex = x_exp(6)
            if t == 5: ex = x_exp(7)
            if t == 6:
                fx = {0: [('v', f"v_mov_b32 v{vAl}, v{vL}"), ('v', f"v_mov_b32 v{vS0}, v{vMc}"), ('v', "s_nop 0"),
                          ('v', f"v_permlane32_swap_b32 v{vL}, v{vAl}")],
                      1: [('v', f"v_add_f32 v{vS1}, v{vL}, v{vAl}"), ('d', f"ds_write_b64 v{vXown}, v[{vS0}:{vS1}] offset:4096")]}
            if t == 7:
                hd += [('v', f"v_xor_b32 v{vDt}, 0x4000, v{vXown}"), ('d', f"ds_read_b64 v[{vS2}:{vS3}], v{vDt} offset:4096")]
            if t < 7: full_step(jobs_pv(t), jobs_op(t), jobs_pv(t + 1), addr_v(), addr_wo(), dm, ex, hd, fx)
            else: full_step(jobs_pv(t), jobs_op(t), jobs_qk(0), addr_k(), addr_wq(), dm, ex, hd, fx)
        g.stamp(1)
        A(f"s_add_u32 s{sKVoff}, s{sKVoff}, 131072")
        A(f"s_add_u32 s{sWoOff}, s{sWoOff}, 131072")
        A(f"s_add_u32 s{sWqOff}, s{sWqOff}, 256")
        A(f"s_add_u32 s{sH}, s{sH}, 1")
        if cfg.loopwarm: A(f"s_mov_b32 s{sWarmQ}, 0x40000000"); A(f"s_mov_b32 s{sWarmO}, 0x40000000")
        A(f"s_cmp_ge_u32 s{sH}, 7"); A(f"s_cselect_b32 s{sWqOff}, 0x80000000, s{sWqOff}")
        A(f"s_cmp_lt_u32 s{sH}, 8"); A("s_cbranch_scc1 L_head")

    def tail():
        g.stamp(0)
        ES = [3, 4, 0, 1, 2, 5, 6, 7] if cfg.wo7 else list(range(8))
        if cfg.wo7:
            g.vwait(("T0",), {("W", 8 + 16 * 8 + 1)})
            A("s_waitcnt lgkmcnt(0)")
        else:
            A("s_waitcnt vmcnt(0) lgkmcnt(0)")
        A("s_barrier")
        for k, s in h_partial_write(): put(k, s)
        for t in range(4 if cfg.wo7 else 0, 8):
            for d in dma_wo(t, ("E", t), ES[t] * 16384): emit_dma(d)
        for e in x_factors(): put(e[1], e[2])
        A("s_waitcnt lgkmcnt(0)")
        A("s_barrier")
        for k, s in h_partial_read(): put(k, s)
        A("s_waitcnt lgkmcnt(0)")
        for e in x_merge(0) + x_merge(1): put(e[1], e[2])
        A("s_waitcnt vmcnt(0) lgkmcnt(0)")
        A("s_barrier")
        g.stamp(0)
        for f in range(8):
            g.ds(f"ds_read_b128 v[{QF+4*f}:{QF+4*f+3}], v{vXq} offset:{(f>>2)*16384 + (f&3)*1024}")
        A(f"v_mov_b32 v{ADW}, v{vWOB}"); A(f"v_add_u32 v{ADK}, 0x10000, v{vWOB}")
        for i in range(1, 4):
            A(f"v_xor_b32 v{ADW+i}, {i<<6}, v{ADW}"); A(f"v_xor_b32 v{ADK+i}, {i<<6}, v{ADK}")
        A(f"s_mov_b32 s{sXS}, s58"); A(f"s_mov_b32 s{sXS+1}, s59"); A(f"s_mov_b32 s{sXS+2}, 0x2000000"); A(f"s_mov_b32 s{sXS+3}, 0x20000")
        sh = 16 if cfg.pbf16 else 17
        A(f"s_lshl_b32 s{sT0}, s{sBR}, 5"); A(f"s_add_u32 s{sT0}, s{sT0}, s{sB}"); A(f"s_lshl_b32 s{sT0}, s{sT0}, 2"); A(f"s_add_u32 s{sT0}, s{sT0}, s{sHG}")
        A(f"s_lshl_b32 s{sT0}, s{sT0}, {sh}"); A(f"s_lshl_b32 s{sT1}, s{sWave}, {sh-2}"); A(f"s_add_u32 s5, s{sT0}, s{sT1}")
        alljobs = []
        for i in range(8):
            for t in range(8):
                def rd(dst, i=i, t=t):
                    sl = ES[t]
                    r = (ADW if sl < 4 else ADK) + (i & 3)
                    return [('d', f"ds_read_b64_tr_b16 v[{dst+2*h}:{dst+2*h+1}], v{r} offset:{(sl&3)*16384 + h*4096 + (i>>2)*256}") for h in range(2)]
                def mf(a, i=i, t=t):
                    d = AOUT + 16 * i
                    return f"v_mfma_f32_32x32x16_bf16 a[{d}:{d+15}], v[{a}:{a+3}], v[{QF+4*t}:{QF+4*t+3}], a[{d}:{d+15}]"
                alljobs.append((rd, mf))
        def store_items(i):
            gs = []
            if cfg.pbf16:
                tb = 32 * (i & 1)
                for ap in range(2):
                    for hh in range(2):
                        k0 = 8 * ap + 4 * hh
                        gs.append([f"v_accvgpr_read_b32 v{tb+k0+k}, a{AOUT+16*i+k0+k}" for k in range(4)] +
                                  [f"v_cvt_pk_bf16_f32 v{tb+16+4*ap+2*hh+k}, v{tb+k0+2*k}, v{tb+k0+2*k+1}" for k in range(2)])
                    gs[-1] += [f"s_add_u32 s{sT0}, s5, {i*2048}",
                               f"buffer_store_dwordx4 v[{tb+16+4*ap}:{tb+19+4*ap}], v{vDWO}, s[{sXS}:{sXS+3}], s{sT0} offen offset:{ap*1024}{cfg.stflags}"]
            else:
                for a in range(4):
                    r = AOUT + 16 * i + 4 * a
                    gs.append([f"s_add_u32 s{sT0}, s5, {i*4096}",
                               f"buffer_store_dwordx4 a[{r}:{r+3}], v{vDWO}, s[{sXS}:{sXS+3}], s{sT0} offen offset:{a*1024}{cfg.stflags}"])
            return gs
        LA = 7
        for j in range(LA): issue_reads(alljobs[j], j % NB)
        for j in range(64):
            b = j % NB
            w = g.cnt - pos[b]
            if w < 500: A(f"s_waitcnt lgkmcnt({min(w, 15)})")
            A(alljobs[j][1](FB + 4 * b))
            n = j + LA
            if n < 64: issue_reads(alljobs[n], n % NB)
            blk, k = j // 8, j % 8
            if blk >= 1 and 3 <= k <= 6:
                for s in store_items(blk - 1)[k - 3]: A(s)
        g.stamp(0)
        A("s_nop 7"); A("s_nop 3")
        for gs in store_items(7):
            for s in gs: A(s)
        A("s_waitcnt vmcnt(0)")
        if cfg.prof:
            g.stamp(0)
            A(f"s_mov_b32 s{sXS+2}, 0x4000000")
            A(f"s_lshl_b32 s{sT0}, s2, 2"); A(f"s_add_u32 s{sT0}, s{sT0}, s{sWave}"); A(f"s_lshl_b32 s{sT0}, s{sT0}, 9"); A(f"s_add_u32 s{sT0}, s{sT0}, 0x2000000")
            A("v_mov_b32 v1, 0")
            for k in range(26): A(f"v_writelane_b32 v1, s{sST+k}, {k}")
            A(f"v_lshrrev_b32 v0, 2, v{vDWO}")
            A(f"buffer_store_dword v1, v0, s[{sXS}:{sXS+3}], s{sT0} offen")
            A("s_waitcnt vmcnt(0)")
        A("L_end:")
        A("s_endpgm")

    def reduce_kernel():
        assert cfg.pbf16
        RT = cfg.rtiles; LB = {1: 3, 2: 2, 4: 1, 8: 0}[RT]
        A(f".globl {RN}"); A(".p2align 8"); A(f".type {RN},@function"); A(f"{RN}:")
        A(f"s_cmp_ge_u32 s2, {512//RT}"); A("s_cbranch_scc1 L_rend")
        A("s_load_dwordx2 s[4:5], s[0:1], 96")
        A("s_load_dwordx2 s[6:7], s[0:1], 80")
        A(f"s_lshr_b32 s16, s2, {LB}"); A(f"s_and_b32 s17, s2, {(1<<LB)-1}"); A(f"s_mul_i32 s17, s17, {RT}")
        A("v_and_b32 v1, 63, v0"); A("v_lshrrev_b32 v2, 6, v0")
        A("v_lshlrev_b32 v3, 4, v1"); A("v_lshl_add_u32 v3, v2, 14, v3")
        A("s_lshl_b32 s18, s16, 18"); A("s_lshl_b32 s19, s17, 11"); A("s_add_u32 s18, s18, s19")
        A("s_waitcnt lgkmcnt(0)")
        A("s_mov_b32 s8, s4"); A("s_mov_b32 s9, s5"); A("s_mov_b32 s10, 0x2000000"); A("s_mov_b32 s11, 0x20000")
        A("s_mov_b32 s12, s6"); A("s_mov_b32 s13, s7"); A("s_mov_b32 s14, 0x400000"); A("s_mov_b32 s15, 0x20000")
        for rt in range(RT):
            for hg in range(4):
                A(f"s_add_u32 s19, s18, {hg*65536 + rt*2048}")
                for ap in range(2):
                    r = 40 + 32 * rt + 8 * hg + 4 * ap
                    A(f"buffer_load_dwordx4 v[{r}:{r+3}], v3, s[8:11], s19 offen offset:{ap*1024}{cfg.rdflags}")
        A("s_and_b32 s20, s16, 31"); A("s_lshr_b32 s21, s16, 5")
        A("s_lshl_b32 s20, s20, 17")
        A("s_lshl_b32 s21, s21, 10"); A("s_add_u32 s20, s20, s21")
        A("s_lshl_b32 s21, s17, 6"); A("s_add_u32 s20, s20, s21")
        A("v_and_b32 v4, 31, v1"); A("v_and_b32 v5, 1, v2"); A("v_lshl_add_u32 v4, v5, 5, v4"); A("v_lshlrev_b32 v4, 11, v4")
        A("v_lshrrev_b32 v5, 1, v2"); A("v_lshl_add_u32 v4, v5, 9, v4")
        A("v_lshrrev_b32 v5, 5, v1"); A("v_lshl_add_u32 v4, v5, 4, v4")
        for rt in range(RT):
            for hg in range(4):
                A(f"s_waitcnt vmcnt({8*(RT-1-rt) + 6 - 2*hg + 2*rt})")
                for k in range(8):
                    r = 40 + 32 * rt + 8 * hg + k
                    if hg == 0:
                        A(f"v_lshlrev_b32 v{8+2*k}, 16, v{r}"); A(f"v_and_b32 v{9+2*k}, 0xffff0000, v{r}")
                    else:
                        A(f"v_lshlrev_b32 v6, 16, v{r}"); A(f"v_and_b32 v7, 0xffff0000, v{r}")
                        A(f"v_add_f32 v{8+2*k}, v{8+2*k}, v6"); A(f"v_add_f32 v{9+2*k}, v{9+2*k}, v7")
            o = 24 + 8 * (rt & 1)
            for j in range(8): A(f"v_cvt_pk_bf16_f32 v{o+j}, v{8+2*j}, v{9+2*j}")
            A(f"buffer_store_dwordx4 v[{o}:{o+3}], v4, s[12:15], s20 offen offset:{rt*64}")
            A(f"buffer_store_dwordx4 v[{o+4}:{o+7}], v4, s[12:15], s20 offen offset:{rt*64+32}")
        A("s_waitcnt vmcnt(0)")
        A("L_rend:")
        A("s_endpgm")
        A('.section .rodata,"a"')
        A(".p2align 6"); A(f".amdhsa_kernel {KN}")
        A("  .amdhsa_next_free_vgpr 512"); A("  .amdhsa_next_free_sgpr 102"); A("  .amdhsa_accum_offset 256")
        A("  .amdhsa_group_segment_fixed_size 0"); A("  .amdhsa_kernarg_size 104"); A("  .amdhsa_user_sgpr_count 2")
        A("  .amdhsa_user_sgpr_kernarg_segment_ptr 1"); A("  .amdhsa_system_sgpr_workgroup_id_x 1"); A(".end_amdhsa_kernel")
        A(".p2align 6"); A(f".amdhsa_kernel {RN}")
        A(f"  .amdhsa_next_free_vgpr {40+32*cfg.rtiles}"); A("  .amdhsa_next_free_sgpr 32"); A(f"  .amdhsa_accum_offset {40+32*cfg.rtiles}")
        A("  .amdhsa_group_segment_fixed_size 0"); A("  .amdhsa_kernarg_size 104"); A("  .amdhsa_user_sgpr_count 2")
        A("  .amdhsa_user_sgpr_kernarg_segment_ptr 1"); A("  .amdhsa_system_sgpr_workgroup_id_x 1"); A(".end_amdhsa_kernel")

    g.emit = False; g.q = []
    prologue(); stage_P()
    for h in range(8): head(h)
    back = dict(pos); backcnt = g.cnt
    tail()
    g.emit = True; g.q = []; g.cnt = 0; g.lab = 0
    prologue(); stage_P()
    for b in range(NB): pos[b] = g.cnt - (backcnt - back[b])
    head(0); tail(); reduce_kernel()
    if "-v" in sys.argv: print(g.req)
    return "\n".join(g.L) + "\n"

if __name__ == "__main__":
    out = sys.argv[1]
    for a in sys.argv[2:]:
        if "=" in a:
            k, v = a.split("=", 1)
            setattr(Cfg, k, eval(v))
    open(out, "w").write(gen())
```
